```python
import torch

def _softmax(x, axis=-1):
    return torch.softmax(x, dim=axis)
def _gelu(x):
    return torch.nn.functional.gelu(x, approximate="tanh")
def _silu(x):
    return torch.nn.functional.silu(x)
def _sigmoid(x):
    return torch.sigmoid(x)
def _layernorm(x, axis=-1, eps=1e-5):
    m = x.mean(dim=axis, keepdim=True)
    v = x.var(dim=axis, keepdim=True, unbiased=False)
    return (x - m) / torch.sqrt(v + eps)
def _scatter_add(tgt, idx, src, axis=0):
    return tgt.clone().index_add_(axis, idx, src)
def _segment_sum(src, seg, n):
    out = torch.zeros((n,) + src.shape[1:], dtype=src.dtype)
    return out.index_add_(0, seg, src)
def _pad(x, pw):
    flat = tuple(v for pair in reversed(pw) for v in pair)
    return torch.nn.functional.pad(x, flat)

kernel_name = 'standalone__paged_block_table_kv_radixattention__sampling'

def setup_inputs():

    _w = (lambda a: (lambda t: t.to(torch.bfloat16) if t.is_floating_point() else t)(torch.as_tensor(a)))
    B, H, Hkv, Dh = 32, 32, 16, 128
    Lk = 2048
    bs = 16
    nb = max(2, Lk // bs)
    P = max(1, nb // 2)
    n_phys = P + B * (nb - P)
    shared = torch.arange(P, dtype=torch.int64)
    priv = P + torch.arange(B * (nb - P), dtype=torch.int64).reshape(B, nb - P)
    bt = torch.cat([torch.tile(shared[None, :], (B, 1)), priv], dim=1)
    ctx = nb * bs - (torch.arange(1, B + 1, dtype=torch.int64) * 2654435761) % max(1, (nb * bs - P * bs) // 2)
    return {
        "q": _w((lambda *s: torch.randn(*s, dtype=torch.bfloat16) * 0.8)(B, H, Dh)),
        "k_cache": _w((lambda *s: torch.randn(*s, dtype=torch.bfloat16) * 0.8)(n_phys, bs, Hkv, Dh)),
        "v_cache": _w((lambda *s: torch.randn(*s, dtype=torch.bfloat16) * 0.05)(n_phys, bs, Hkv, Dh)),
        "block_table": _w(bt.to(torch.int64)),
        "ctx_lens": _w(torch.as_tensor(ctx).to(torch.int64)),
    }

def reference(q, k_cache, v_cache, block_table, ctx_lens):
    B, H, Dh = q.shape
    n_phys, bs, Hkv, _ = k_cache.shape
    nb = block_table.shape[1]
    Lk = nb * bs
    rep = H // Hkv
    k = k_cache[block_table].reshape(B, Lk, Hkv, Dh)
    v = v_cache[block_table].reshape(B, Lk, Hkv, Dh)
    k = (lambda x, n, axis: torch.repeat_interleave(x, n, dim=axis))(k, rep, axis=2)
    v = (lambda x, n, axis: torch.repeat_interleave(x, n, dim=axis))(v, rep, axis=2)
    scores = torch.einsum("bhd,bkhd->bhk", q, k) * (Dh ** -0.5)
    pos = torch.arange(Lk)
    valid = pos[None, :] < ctx_lens[:, None]
    scores = torch.where(valid[:, None, :], scores, -1e9)
    p = _softmax(scores, axis=-1)
    return torch.einsum("bhk,bkhd->bhd", p, v)
```

```python
import sys, math
KNAME = "standalone__paged_block_table_kv_radixattention__sampling_kernel"
KVBYTES = 138412032
OOB = 0x40000000

def gen(NP=6, NS=6, fp=" nt", fs="", stamp=False):
    L = []
    a = L.append
    sW, sH, sP, sA, sB, sCA, sCB, sS, sT, sTau = 40,41,42,43,44,45,46,47,48,49
    sSet = [50, 54]; sPack = 58; sTmp = 68
    sMask = [60,62,64,66]
    vLane=0
    vKoff, vVoff, vM0, vM1, vShift, vScale, vNinf = 2,3,4,5,6,7,8
    vT = [9,10,11,12]
    vList = [14,15,16,17]; vPackL = 18
    vRem = 19
    vQ = 20
    vOa = 24; vOb = 28
    vMx, vLs, vAl, vX, vY = 32,33,34,35,36
    vS = [38,39,40,41]
    vD = [44,48,52,56]
    vP = 128
    RING = 64
    t0,t1,t2,t3,t4,t5,t6,t7 = 148,149,150,151,152,153,154,155
    LDS_BT=0; OB=16384; ESTR=1088; WSTR=2*ESTR; MB=OB+8*WSTR; LB=MB+128; LDSZ=LB+128
    a(f"s_cmp_ge_u32 s2, 256"); a("s_cbranch_scc1 L_end")
    a("s_load_dwordx8 s[4:11], s[0:1], 0")
    a("s_load_dwordx4 s[12:15], s[0:1], 32")
    if stamp:
        a("s_load_dwordx2 s[80:81], s[0:1], 56"); a("s_memrealtime s[82:83]")
    a("v_lshrrev_b32 v1, 6, v0")
    a("v_lshlrev_b32 v13, 4, v0")
    a("v_and_b32 v0, 63, v0")
    a(f"v_readfirstlane_b32 s{sW}, v1")
    a(f"s_and_b32 s{sH}, s2, 15"); a(f"s_lshr_b32 s{sP}, s2, 4")
    a(f"v_and_b32 v{t0}, 31, v0")
    a(f"v_lshrrev_b32 v{t1}, 5, v0"); a(f"v_and_b32 v{t2}, 15, v0")
    a(f"v_lshl_add_u32 v{t1}, v{t1}, 4, v{t2}")
    a(f"v_lshlrev_b32 v{t2}, 2, v{t0}"); a(f"v_lshlrev_b32 v{t3}, 2, v{t1}")
    a(f"s_lshl_b32 s{sTmp}, s{sW}, 10")
    a(f"s_mov_b32 m0, s{sTmp}")
    a("s_waitcnt lgkmcnt(0)")
    def srd(d, p, n):
        a(f"s_mov_b32 s{d}, s{p}"); a(f"s_mov_b32 s{d+1}, s{p+1}")
        a(f"s_mov_b32 s{d+2}, {n}"); a(f"s_mov_b32 s{d+3}, 0x20000")
    srd(32, 12, 128); srd(28, 10, 16384)
    a(f"buffer_load_dword v{t4}, v{t2}, s[32:35], 0 offen")
    a(f"buffer_load_dword v{t5}, v{t3}, s[32:35], 0 offen")
    a(f"buffer_load_dwordx4 v13, s[28:31], 0 offen lds")
    a(f"s_add_u32 s{sTmp}, s{sTmp}, 8192"); a(f"s_mov_b32 m0, s{sTmp}")
    a(f"s_movk_i32 s{sTmp+1}, 0x2000")
    a(f"buffer_load_dwordx4 v13, s[28:31], s{sTmp+1} offen lds")
    srd(16, 6, KVBYTES); srd(20, 8, KVBYTES); srd(24, 4, 262144); srd(36, 14, 262144)
    a(f"v_lshrrev_b32 v{vT[0]}, 4, v0")
    for j in range(1,4): a(f"v_add_u32 v{vT[j]}, {16*j}, v{vT[0]}")
    a(f"v_and_b32 v{t6}, 15, v0"); a(f"v_lshlrev_b32 v{t6}, 4, v{t6}")
    a(f"v_lshl_add_u32 v{vVoff}, v{vT[0]}, 12, v{t6}")
    a(f"v_and_b32 v{t6}, 3, v0"); a(f"v_lshlrev_b32 v{t6}, 4, v{t6}")
    a(f"v_lshl_add_u32 v{t6}, v{vT[0]}, 6, v{t6}")
    a(f"v_bfe_u32 v{t7}, v0, 2, 2")
    a(f"v_lshl_add_u32 v{vKoff}, v{t7}, 12, v{t6}")
    a(f"v_bfe_u32 v{t7}, v0, 2, 1")
    a(f"v_lshl_add_u32 v13, v{t7}, 8, v{t6}")
    a(f"v_and_b32 v{t7}, 1, v0"); a(f"v_lshlrev_b32 v{t7}, 4, v{t7}")
    a(f"v_mov_b32 v{vM0}, 0xffff"); a(f"v_lshlrev_b32 v{vM0}, v{t7}, v{vM0}")
    a(f"v_bfe_i32 v{t7}, v0, 1, 1")
    a(f"v_and_b32 v{vM1}, v{vM0}, v{t7}"); a(f"v_xor_b32 v{vM0}, v{vM0}, v{vM1}")
    a(f"v_and_b32 v{vShift}, 8, v0"); a(f"v_lshlrev_b32 v{vShift}, 1, v{vShift}")
    sc = math.log2(math.e)/math.sqrt(128.0)
    import struct
    a(f"v_mov_b32 v{vScale}, 0x{struct.unpack('<I',struct.pack('<f',sc))[0]:08x}")
    a(f"v_mov_b32 v{vNinf}, 0xff800000")
    for i in range(8): a(f"v_mov_b32 v{vOa+i}, 0")
    a(f"v_mov_b32 v{vMx}, 0xf149f2ca")
    a(f"v_mov_b32 v{vLs}, 0")
    for j in range(5):
        a(f"v_mov_b32 v{vP+4*j}, 0"); a(f"v_mov_b32 v{vP+4*j+1}, 0")
    a("s_waitcnt vmcnt(2)")
    a(f"v_add_u32 v{t2}, -1, v{t4}"); a(f"v_add_u32 v{t3}, -1, v{t5}")
    a(f"v_min_u32 v{t2}, 0x7ff, v{t2}"); a(f"v_min_u32 v{t3}, 0x7ff, v{t3}")
    a(f"v_lshl_add_u32 v{t5}, v{t3}, 5, v{t1}")
    a(f"v_lshl_add_u32 v{t6}, v{t2}, 5, v{t0}")
    a(f"v_add_u32 v{t2}, 1, v{t2}")
    a(f"v_sub_u32 v{t3}, v{t5}, v{t6}")
    a(f"v_lshrrev_b32 v{t7}, 31, v{t3}")
    for k in range(1,16):
        a(f"v_sub_u32_dpp v{t3}, v{t5}, v{t6} row_ror:{k} row_mask:0xf bank_mask:0xf")
        a(f"v_alignbit_b32 v{t7}, v{t7}, v{t3}, 31")
    a(f"v_bcnt_u32_b32 v{t7}, v{t7}, 0")
    a(f"v_mov_b32 v{t3}, v{t7}")
    a(f"s_sub_u32 s{sTmp}, 31, s{sP}")
    a("s_nop 0")
    a(f"v_permlane32_swap_b32 v{t3}, v{t7}")
    a(f"v_add_u32 v{t7}, v{t3}, v{t7}")
    a(f"v_cmp_eq_u32 s[60:61], s{sP}, v{t7}")
    a(f"v_cmp_eq_u32 s[62:63], s{sTmp}, v{t7}")
    a(f"s_ff1_i32_b32 s{sA}, s60"); a(f"s_ff1_i32_b32 s{sB}, s62")
    a(f"v_readlane_b32 s{sCA}, v{t2}, s{sA}"); a(f"v_readlane_b32 s{sCB}, v{t2}, s{sB}")
    a(f"v_readlane_b32 s70, v{t4}, s{sA}"); a(f"v_readlane_b32 s71, v{t4}, s{sB}")
    a(f"s_lshl_b32 s72, s{sH}, 9")
    a(f"s_lshl_b32 s73, s{sA}, 13"); a(f"s_lshl_b32 s74, s{sB}, 13")
    a(f"s_add_u32 s73, s73, s72"); a(f"s_add_u32 s74, s74, s72")
    a("s_cmp_lt_i32 s70, 1"); a(f"s_cselect_b32 s75, {OOB}, s73")
    a("s_cmp_lt_i32 s71, 1"); a(f"s_cselect_b32 s76, {OOB}, s74")
    a(f"v_cmp_eq_u32 vcc, 0, v{vShift}")
    a(f"v_mov_b32 v{t0}, s76"); a(f"v_mov_b32 v{t1}, s75")
    a(f"v_cndmask_b32 v{t0}, v{t0}, v{t1}, vcc")
    a(f"v_add_u32 v13, v13, v{t0}")
    a(f"v_lshlrev_b32 v{t0}, 3, v0")
    a(f"s_lshl_b32 s77, s{sA}, 9"); a(f"s_lshl_b32 s78, s{sB}, 9")
    a(f"v_add_u32 v{t1}, s78, v{t0}"); a(f"v_add_u32 v{t0}, s77, v{t0}")
    a("s_waitcnt vmcnt(0)")
    a("s_barrier")
    a(f"ds_read_b64 v[{t2}:{t3}], v{t0}"); a(f"ds_read_b64 v[{t4}:{t5}], v{t1}")
    a(f"buffer_load_dwordx4 v[{vQ}:{vQ+3}], v13, s[24:27], 0 offen")
    a(f"s_lshr_b32 s70, s{sCA}, 4"); a(f"s_lshr_b32 s71, s{sCB}, 4"); a(f"s_min_u32 s{sS}, s70, s71")
    a(f"s_and_b32 s79, s{sW}, 3")
    a("s_waitcnt lgkmcnt(0)")
    a(f"v_cmp_ne_u32 s[60:61], v{t2}, v{t4}"); a(f"v_cmp_ne_u32 s[62:63], v{t3}, v{t5}")
    a("s_ff1_i32_b64 s70, s[60:61]"); a("s_ff1_i32_b64 s71, s[62:63]")
    a("s_lshl_b32 s70, s70, 1"); a("s_lshl_b32 s71, s71, 1"); a("s_or_b32 s71, s71, 1")
    a("s_min_u32 s70, s70, s71"); a(f"s_min_u32 s{sS}, s{sS}, s70")
    a(f"s_lshl_b32 s70, s79, 2")
    a(f"s_sub_u32 s71, 12, s70")
    a(f"s_sub_u32 s87, s{sCA}, s70"); a(f"s_sub_u32 s88, s{sCB}, s71")
    a(f"s_add_u32 s85, s87, 15"); a(f"s_add_u32 s86, s88, 15")
    a(f"s_lshr_b32 s85, s85, 4"); a(f"s_lshr_b32 s86, s86, 4")
    a(f"s_sub_u32 s85, s85, s{sS}"); a(f"s_sub_u32 s86, s86, s{sS}")
    a(f"s_lshl_b32 s89, s70, 12"); a(f"s_lshl_b32 s90, s71, 12")
    a(f"s_lshl_b32 s72, s{sH}, 8"); a("s_add_u32 s89, s89, s72"); a("s_add_u32 s90, s90, s72")
    a(f"s_lshl_b32 s72, s{sS}, 4")
    a(f"s_cmp_ge_u32 s{sW}, 4")
    a(f"s_cselect_b32 s84, 0, s{sS}")
    a(f"s_cselect_b32 s85, s{sS}, s85")
    a(f"s_cselect_b32 s86, 0, s86")
    a(f"s_cselect_b32 s87, s72, s87")
    a(f"s_cselect_b32 s88, 0, s88")
    a(f"s_cselect_b32 s91, 0x10001, 1")
    a("s_add_u32 s92, s85, 3"); a("s_lshr_b32 s92, s92, 2")
    a("s_add_u32 s70, s86, 3"); a("s_lshr_b32 s70, s70, 2"); a(f"s_add_u32 s{sT}, s92, s70")
    a(f"v_cmp_gt_u32 vcc, s92, v0")
    a(f"v_subrev_u32 v{t0}, s92, v0")
    def sel(d, sa, sb):
        a(f"v_mov_b32 v{d}, {sb}"); a(f"v_mov_b32 v{t7}, {sa}"); a(f"v_cndmask_b32 v{d}, v{d}, v{t7}, vcc")
    a(f"v_mov_b32 v{t1}, s78"); a(f"v_mov_b32 v{t7}, s77")
    a(f"v_cndmask_b32 v{t0}, v{t0}, v0, vcc")
    a(f"v_cndmask_b32 v{t1}, v{t1}, v{t7}, vcc")
    a(f"v_lshlrev_b32 v{t0}, 2, v{t0}")
    a(f"v_add_u32 v{t2}, s84, v{t0}")
    a(f"v_lshl_add_u32 v{t1}, v{t2}, 2, v{t1}")
    a(f"ds_read2_b32 v[{vList[0]}:{vList[1]}], v{t1} offset0:0 offset1:1")
    a(f"ds_read2_b32 v[{vList[2]}:{vList[3]}], v{t1} offset0:2 offset1:3")
    sel(t3, "s85", "s86"); a(f"v_sub_u32 v{t3}, v{t3}, v{t0}")
    sel(t4, "s87", "s88"); a(f"v_lshlrev_b32 v{t2}, 4, v{t2}"); a(f"v_sub_u32 v{t4}, v{t4}, v{t2}")
    a(f"v_med3_i32 v{t4}, v{t4}, 0, 64")
    sel(t5, "s91", "0x10000"); a(f"v_mul_u32_u24 v{vPackL}, v{t4}, v{t5}")
    sel(t5, "s89", "s90")
    a(f"v_mov_b32 v{t6}, {OOB}")
    for j in range(4): a(f"v_cmp_lt_i32 s[{sMask[j]}:{sMask[j]+1}], {j}, v{t3}")
    a("s_waitcnt lgkmcnt(0)")
    for j in range(4): a(f"v_lshl_add_u32 v{vList[j]}, v{vList[j]}, 16, v{t5}")
    for j in range(4): a(f"v_cndmask_b32 v{vList[j]}, v{t6}, v{vList[j]}, s[{sMask[j]}:{sMask[j]+1}]")
    a(f"s_mov_b32 s{sTau}, 0")
    if stamp: a("s_memrealtime s[94:95]")
    a(f"s_cmp_eq_u32 s{sT}, 0"); a("s_cbranch_scc1 L_epi")
    a(f"s_cmp_ge_u32 s{sW}, 4"); a("s_cbranch_scc1 L_shared")

    def loop(tag, N, fl):
        dmax = (7+N)//8
        def issue(par, k):
            d, kk = divmod(k, 8)
            pp = (par+d) & 1
            r = RING + (pp*8+kk)*4
            srd_, vo = ("s[16:19]", vKoff) if kk < 4 else ("s[20:23]", vVoff)
            a(f"buffer_load_dwordx4 v[{r}:{r+3}], v{vo}, {srd_}, s{sSet[pp]+(kk&3)} offen{fl}")
        for d in range(dmax):
            for j in range(4): a(f"v_readlane_b32 s{sSet[d]+j}, v{vList[j]}, {d}")
        a("s_nop 4")
        for k in range(N): issue(0, k)
        for par in range(2):
            a(f"L_{tag}{par}:")
            a(f"s_add_u32 s{sTmp}, s{sTau}, {dmax}")
            a(f"v_readlane_b32 s{sPack}, v{vPackL}, s{sTau}")
            st = sSet[(par+dmax)&1]
            for j in range(4): a(f"v_readlane_b32 s{st+j}, v{vList[j]}, s{sTmp}")
            a(f"v_bfe_u32 v{vRem}, s{sPack}, v{vShift}, 16")
            a(f"s_add_u32 s{sTau}, s{sTau}, 1")
            for j in range(4): a(f"v_cmp_gt_u32 s[{sMask[j]}:{sMask[j]+1}], v{vRem}, v{vT[j]}")
            for j in range(4): a(f"v_cndmask_b32 v{vS[j]}, v{vNinf}, 0, s[{sMask[j]}:{sMask[j]+1}]")
            def dpp(j):
                for i in range(4):
                    a(f"v_fmac_f32_dpp v{vS[j]}, v{vD[j]+i}, v{vScale} quad_perm:[{i},{i},{i},{i}] row_mask:0xf bank_mask:0xf")
            for j in range(4):
                r = RING + (par*8+j)*4
                a(f"s_waitcnt vmcnt({N-1})")
                issue(par, j+N)
                a(f"v_mfma_f32_16x16x32_bf16 v[{vD[j]}:{vD[j]+3}], v[{r}:{r+3}], v[{vQ}:{vQ+3}], 0")
                if j == 2: a("s_nop 1")
                if j >= 2: dpp(j-2)
            dpp(2); dpp(3)
            a(f"v_max3_f32 v{vX}, v{vS[0]}, v{vS[1]}, v{vS[2]}")
            a(f"v_max3_f32 v{vX}, v{vX}, v{vS[3]}, v{vMx}")
            a(f"v_mov_b32 v{vY}, v{vX}"); a("s_nop 1")
            a(f"v_permlane16_swap_b32 v{vY}, v{vX}")
            a(f"v_max_f32 v{vX}, v{vX}, v{vY}")
            a(f"v_mov_b32 v{vY}, v{vX}"); a("s_nop 1")
            a(f"v_permlane32_swap_b32 v{vY}, v{vX}")
            a(f"v_max_f32 v{vX}, v{vX}, v{vY}")
            a(f"v_sub_f32 v{vAl}, v{vMx}, v{vX}")
            for j in range(4): a(f"v_sub_f32 v{vS[j]}, v{vS[j]}, v{vX}")
            a(f"v_exp_f32 v{vAl}, v{vAl}")
            for j in range(4): a(f"v_exp_f32 v{vS[j]}, v{vS[j]}")
            a(f"v_mov_b32 v{vMx}, v{vX}")
            for j in range(4): a(f"v_cvt_pk_bf16_f32 v{vD[j]}, v{vS[j]}, v{vS[j]}")
            for i in range(8): a(f"v_mul_f32 v{vOa+i}, v{vAl}, v{vOa+i}")
            for j in range(4):
                a(f"v_and_b32 v{vP+2+4*j}, v{vM0}, v{vD[j]}"); a(f"v_and_b32 v{vP+3+4*j}, v{vM1}, v{vD[j]}")
            a(f"v_fma_f32 v{vLs}, v{vLs}, v{vAl}, v{vS[0]}")
            a(f"v_add_f32 v{vS[1]}, v{vS[1]}, v{vS[2]}")
            a(f"v_add_f32 v{vLs}, v{vLs}, v{vS[3]}")
            a(f"v_add_f32 v{vLs}, v{vLs}, v{vS[1]}")
            for j in range(4):
                r = RING + (par*8+4+j)*4
                a(f"s_waitcnt vmcnt({N-1})")
                issue(par, 4+j+N)
                a(f"v_mfma_f32_16x16x32_bf16 v[{vOa}:{vOa+3}], v[{r}:{r+3}], v[{vP+2+4*j}:{vP+5+4*j}], v[{vOa}:{vOa+3}]")
                a(f"v_mfma_f32_16x16x32_bf16 v[{vOb}:{vOb+3}], v[{r}:{r+3}], v[{vP+4*j}:{vP+3+4*j}], v[{vOb}:{vOb+3}]")
            a(f"s_cmp_ge_u32 s{sTau}, s{sT}")
            if par == 0: a("s_cbranch_scc1 L_epi")
            else:
                a(f"s_cbranch_scc0 L_{tag}0"); a("s_branch L_epi")
    loop("p", NP, fp)
    a("L_shared:")
    loop("s", NS, fs)
    a("L_epi:")
    if stamp: a("s_memrealtime s[96:97]")
    a(f"v_mov_b32 v{vY}, v{vLs}")
    a(f"v_lshlrev_b32 v{t0}, 4, v0")
    a(f"s_mul_i32 s70, s{sW}, {WSTR}"); a(f"s_add_u32 s70, s70, {OB}")
    a(f"v_permlane16_swap_b32 v{vY}, v{vLs}")
    a(f"v_add_f32 v{vLs}, v{vLs}, v{vY}")
    a(f"v_mov_b32 v{vY}, v{vLs}")
    a(f"v_add_u32 v{t0}, s70, v{t0}")
    a(f"v_bfe_u32 v{t1}, v0, 2, 2")
    a(f"v_permlane32_swap_b32 v{vY}, v{vLs}")
    a(f"v_add_f32 v{vLs}, v{vLs}, v{vY}")
    a(f"s_lshl_b32 s71, s{sW}, 2"); a(f"s_add_u32 s71, s71, {MB}")
    a(f"v_lshl_add_u32 v{t1}, v{t1}, 5, s71")
    a(f"ds_write_b128 v{t0}, v[{vOa}:{vOa+3}]")
    a(f"ds_write_b128 v{t0}, v[{vOb}:{vOb+3}] offset:{ESTR}")
    a(f"ds_write2_b32 v{t1}, v{vMx}, v{vLs} offset0:0 offset1:32")
    a(f"s_lshr_b32 s70, s{sW}, 1"); a(f"s_and_b32 s71, s{sW}, 1")
    a(f"s_lshl_b32 s72, s70, 5"); a(f"s_add_u32 s72, s72, {MB}"); a(f"v_mov_b32 v{t2}, s72")
    a(f"s_lshl_b32 s72, s71, 9"); a(f"s_lshl_b32 s77, s70, 6"); a("s_add_u32 s72, s72, s77"); a(f"s_add_u32 s72, s72, {OB}")
    a(f"v_lshrrev_b32 v{t3}, 5, v0"); a(f"v_lshl_add_u32 v{t3}, v{t3}, 8, s72")
    a(f"v_and_b32 v{t4}, 3, v0"); a(f"v_lshl_add_u32 v{t3}, v{t4}, 4, v{t3}")
    a(f"v_bfe_u32 v{t4}, v0, 3, 2"); a(f"v_lshl_add_u32 v{t3}, v{t4}, 2, v{t3}")
    a(f"v_bfe_u32 v{t4}, v0, 2, 1"); a(f"v_mul_u32_u24 v{t4}, {ESTR}, v{t4}"); a(f"v_add_u32 v{t3}, v{t3}, v{t4}")
    a(f"s_cmp_ge_u32 s{sW}, 4"); a("s_cselect_b32 s72, s74, s73")
    a(f"s_and_b32 s70, s70, 1"); a("s_lshl_b32 s70, s70, 8"); a("s_lshl_b32 s71, s71, 7")
    a("s_add_u32 s72, s72, s70"); a("s_add_u32 s72, s72, s71")
    a(f"v_lshlrev_b32 v{t4}, 1, v0")
    a("s_waitcnt lgkmcnt(0)")
    a("s_barrier")
    E=160
    a(f"ds_read_b128 v[{E}:{E+3}], v{t2}"); a(f"ds_read_b128 v[{E+4}:{E+7}], v{t2} offset:16")
    a(f"ds_read_b128 v[{E+8}:{E+11}], v{t2} offset:128"); a(f"ds_read_b128 v[{E+12}:{E+15}], v{t2} offset:144")
    for w in range(8): a(f"ds_read_b32 v{E+16+w}, v{t3} offset:{w*WSTR}")
    a("s_waitcnt lgkmcnt(10)")
    a(f"v_max3_f32 v{vX}, v{E}, v{E+1}, v{E+2}"); a(f"v_max3_f32 v{vY}, v{E+3}, v{E+4}, v{E+5}")
    a(f"v_max3_f32 v{vX}, v{vX}, v{E+6}, v{E+7}"); a(f"v_max_f32 v{vX}, v{vX}, v{vY}")
    for w in range(8): a(f"v_sub_f32 v{E+w}, v{E+w}, v{vX}")
    for w in range(8): a(f"v_exp_f32 v{E+w}, v{E+w}")
    a("s_waitcnt lgkmcnt(8)")
    a(f"v_mul_f32 v{vX}, v{E}, v{E+8}")
    for w in range(1,8): a(f"v_fmac_f32 v{vX}, v{E+w}, v{E+8+w}")
    a(f"v_rcp_f32 v{vX}, v{vX}")
    a("s_waitcnt lgkmcnt(0)")
    a(f"v_mul_f32 v{vY}, v{E}, v{E+16}")
    for w in range(1,8): a(f"v_fmac_f32 v{vY}, v{E+w}, v{E+16+w}")
    a(f"v_mul_f32 v{vY}, v{vY}, v{vX}")
    a(f"v_cvt_pk_bf16_f32 v{vY}, v{vY}, v{vY}")
    a(f"buffer_store_short v{vY}, v{t4}, s[36:39], s72 offen")
    if stamp:
        a("s_memrealtime s[98:99]"); a("s_waitcnt lgkmcnt(0)")
        a(f"s_lshl_b32 s70, s2, 3"); a(f"s_add_u32 s70, s70, s{sW}"); a("s_lshl_b32 s70, s70, 5")
        a("s_getreg_b32 s83, hwreg(HW_REG_XCC_ID)")
        a("v_mov_b32 v10, s82"); a("v_mov_b32 v11, s94"); a("v_mov_b32 v12, s96"); a("v_mov_b32 v13, s98")
        a("v_mov_b32 v14, s70"); a("v_mov_b32 v16, s83"); a(f"v_mov_b32 v17, s{sT}")
        a("v_cmp_eq_u32 vcc, 0, v0"); a("s_and_saveexec_b64 s[34:35], vcc")
        a("global_store_dwordx4 v14, v[10:13], s[80:81]")
        a("global_store_dwordx2 v14, v[16:17], s[80:81] offset:16")
    a("L_end:"); a("s_endpgm")
    hdr = open("ref_stub.s").read()
    top = hdr[:hdr.index("; @launch")]
    out = top + f"; @launch grid=(256,1,1) block=(512,1,1) lds={LDSZ}\n"
    out += f""".amdgcn_target "amdgcn-amd-amdhsa--gfx950"
.text
.globl {KNAME}
.p2align 8
.type {KNAME},@function
{KNAME}:
""" + "\n".join(("" if x.endswith(":") else "    ")+x for x in L) + f"""
.section .rodata,"a"
.p2align 6
.amdhsa_kernel {KNAME}
  .amdhsa_next_free_vgpr 192
  .amdhsa_next_free_sgpr 102
  .amdhsa_accum_offset 192
  .amdhsa_group_segment_fixed_size 0
  .amdhsa_kernarg_size 64
  .amdhsa_user_sgpr_count 2
  .amdhsa_user_sgpr_kernarg_segment_ptr 1
  .amdhsa_system_sgpr_workgroup_id_x 1
.end_amdhsa_kernel
"""
    return out
if __name__ == "__main__":
    kw = eval("dict(%s)" % (sys.argv[2] if len(sys.argv) > 2 else ""))
    open(sys.argv[1], "w").write(gen(**kw))
```

```python
import sys, math
KNAME = "standalone__paged_block_table_kv_radixattention__sampling_kernel"
KVBYTES = 138412032
OOB = 0x40000000

def gen(NP=6, NS=6, fp=" nt", fs="", stamp=False, noshared=False, nopriv=False, klinear=False, calib=0):
    L = []
    a = L.append
    sW, sH, sP, sA, sB, sCA, sCB, sS, sT, sTau = 40,41,42,43,44,45,46,47,48,49
    sSet = [50, 54]; sPack = 58; sTmp = 68
    sMask = [60,62,64,66]
    vLane=0
    vKoff, vVoff, vM0, vM1, vShift, vScale, vNinf = 2,3,4,5,6,7,8
    vT = [9,10,11,12]
    vList = [14,15,16,17]; vPackL = 18
    vRem = 19
    vQ = 20
    vOa = 24; vOb = 28
    vMx, vLs, vAl, vX, vY = 32,33,34,35,36
    vS = [38,39,40,41]
    vD = [44,48,52,56]
    vP = 128
    RING = 64
    t0,t1,t2,t3,t4,t5,t6,t7 = 148,149,150,151,152,153,154,155
    LDS_BT=0; OB=16384; ESTR=1088; WSTR=2*ESTR; MB=OB+8*WSTR; LB=MB+128; LDSZ=LB+128
    a(f"s_cmp_ge_u32 s2, 256"); a("s_cbranch_scc1 L_end")
    a("s_load_dwordx8 s[4:11], s[0:1], 0")
    a("s_load_dwordx4 s[12:15], s[0:1], 32")
    if stamp:
        a("s_load_dwordx2 s[80:81], s[0:1], 56"); a("s_memrealtime s[82:83]")
    if calib: a("s_memrealtime s[82:83]")
    a("v_lshrrev_b32 v1, 6, v0")
    a("v_lshlrev_b32 v13, 4, v0")
    a("v_and_b32 v0, 63, v0")
    a(f"v_readfirstlane_b32 s{sW}, v1")
    a(f"s_and_b32 s{sH}, s2, 15"); a(f"s_lshr_b32 s{sP}, s2, 4")
    a(f"v_and_b32 v{t0}, 31, v0")
    a(f"v_lshrrev_b32 v{t1}, 5, v0"); a(f"v_and_b32 v{t2}, 15, v0")
    a(f"v_lshl_add_u32 v{t1}, v{t1}, 4, v{t2}")
    a(f"v_lshlrev_b32 v{t2}, 2, v{t0}"); a(f"v_lshlrev_b32 v{t3}, 2, v{t1}")
    a(f"s_lshl_b32 s{sTmp}, s{sW}, 10")
    a(f"s_mov_b32 m0, s{sTmp}")
    a("s_waitcnt lgkmcnt(0)")
    def srd(d, p, n):
        a(f"s_mov_b32 s{d}, s{p}"); a(f"s_mov_b32 s{d+1}, s{p+1}")
        a(f"s_mov_b32 s{d+2}, {n}"); a(f"s_mov_b32 s{d+3}, 0x20000")
    srd(32, 12, 128); srd(28, 10, 16384)
    a(f"buffer_load_dword v{t4}, v{t2}, s[32:35], 0 offen")
    a(f"buffer_load_dword v{t5}, v{t3}, s[32:35], 0 offen")
    a(f"buffer_load_dwordx4 v13, s[28:31], 0 offen lds")
    a(f"s_add_u32 s{sTmp}, s{sTmp}, 8192"); a(f"s_mov_b32 m0, s{sTmp}")
    a(f"s_movk_i32 s{sTmp+1}, 0x2000")
    a(f"buffer_load_dwordx4 v13, s[28:31], s{sTmp+1} offen lds")
    srd(16, 6, KVBYTES); srd(20, 8, KVBYTES); srd(24, 4, 262144); srd(36, 14, 262144)
    a(f"v_lshrrev_b32 v{vT[0]}, 4, v0")
    for j in range(1,4): a(f"v_add_u32 v{vT[j]}, {16*j}, v{vT[0]}")
    a(f"v_and_b32 v{t6}, 15, v0"); a(f"v_lshlrev_b32 v{t6}, 4, v{t6}")
    a(f"v_lshl_add_u32 v{vVoff}, v{vT[0]}, 12, v{t6}")
    a(f"v_and_b32 v{t6}, 3, v0"); a(f"v_lshlrev_b32 v{t6}, 4, v{t6}")
    a(f"v_lshl_add_u32 v{t6}, v{vT[0]}, 6, v{t6}")
    a(f"v_bfe_u32 v{t7}, v0, 2, 2")
    a(f"v_lshl_add_u32 v{vKoff}, v{t7}, 12, v{t6}")
    a(f"v_bfe_u32 v{t7}, v0, 2, 1")
    a(f"v_lshl_add_u32 v13, v{t7}, 8, v{t6}")
    a(f"v_and_b32 v{t7}, 1, v0"); a(f"v_lshlrev_b32 v{t7}, 4, v{t7}")
    a(f"v_mov_b32 v{vM0}, 0xffff"); a(f"v_lshlrev_b32 v{vM0}, v{t7}, v{vM0}")
    a(f"v_bfe_i32 v{t7}, v0, 1, 1")
    a(f"v_and_b32 v{vM1}, v{vM0}, v{t7}"); a(f"v_xor_b32 v{vM0}, v{vM0}, v{vM1}")
    a(f"v_and_b32 v{vShift}, 8, v0"); a(f"v_lshlrev_b32 v{vShift}, 1, v{vShift}")
    sc = math.log2(math.e)/math.sqrt(128.0)
    import struct
    a(f"v_mov_b32 v{vScale}, 0x{struct.unpack('<I',struct.pack('<f',sc))[0]:08x}")
    a(f"v_mov_b32 v{vNinf}, 0xff800000")
    for i in range(8): a(f"v_mov_b32 v{vOa+i}, 0")
    a(f"v_mov_b32 v{vMx}, 0xf149f2ca")
    a(f"v_mov_b32 v{vLs}, 0")
    for j in range(5):
        a(f"v_mov_b32 v{vP+4*j}, 0"); a(f"v_mov_b32 v{vP+4*j+1}, 0")
    a("s_waitcnt vmcnt(2)")
    a(f"v_add_u32 v{t2}, -1, v{t4}"); a(f"v_add_u32 v{t3}, -1, v{t5}")
    a(f"v_min_u32 v{t2}, 0x7ff, v{t2}"); a(f"v_min_u32 v{t3}, 0x7ff, v{t3}")
    a(f"v_lshl_add_u32 v{t5}, v{t3}, 5, v{t1}")
    a(f"v_lshl_add_u32 v{t6}, v{t2}, 5, v{t0}")
    a(f"v_add_u32 v{t2}, 1, v{t2}")
    a(f"v_sub_u32 v{t3}, v{t5}, v{t6}")
    a(f"v_lshrrev_b32 v{t7}, 31, v{t3}")
    for k in range(1,16):
        a(f"v_sub_u32_dpp v{t3}, v{t5}, v{t6} row_ror:{k} row_mask:0xf bank_mask:0xf")
        a(f"v_alignbit_b32 v{t7}, v{t7}, v{t3}, 31")
    a(f"v_bcnt_u32_b32 v{t7}, v{t7}, 0")
    a(f"v_mov_b32 v{t3}, v{t7}")
    a(f"s_sub_u32 s{sTmp}, 31, s{sP}")
    a("s_nop 0")
    a(f"v_permlane32_swap_b32 v{t3}, v{t7}")
    a(f"v_add_u32 v{t7}, v{t3}, v{t7}")
    a(f"v_cmp_eq_u32 s[60:61], s{sP}, v{t7}")
    a(f"v_cmp_eq_u32 s[62:63], s{sTmp}, v{t7}")
    a(f"s_ff1_i32_b32 s{sA}, s60"); a(f"s_ff1_i32_b32 s{sB}, s62")
    a(f"v_readlane_b32 s{sCA}, v{t2}, s{sA}"); a(f"v_readlane_b32 s{sCB}, v{t2}, s{sB}")
    a(f"v_readlane_b32 s70, v{t4}, s{sA}"); a(f"v_readlane_b32 s71, v{t4}, s{sB}")
    a(f"s_lshl_b32 s72, s{sH}, 9")
    a(f"s_lshl_b32 s73, s{sA}, 13"); a(f"s_lshl_b32 s74, s{sB}, 13")
    a(f"s_add_u32 s73, s73, s72"); a(f"s_add_u32 s74, s74, s72")
    a("s_cmp_lt_i32 s70, 1"); a(f"s_cselect_b32 s75, {OOB}, s73")
    a("s_cmp_lt_i32 s71, 1"); a(f"s_cselect_b32 s76, {OOB}, s74")
    a(f"v_cmp_eq_u32 vcc, 0, v{vShift}")
    a(f"v_mov_b32 v{t0}, s76"); a(f"v_mov_b32 v{t1}, s75")
    a(f"v_cndmask_b32 v{t0}, v{t0}, v{t1}, vcc")
    a(f"v_add_u32 v13, v13, v{t0}")
    a(f"v_lshlrev_b32 v{t0}, 3, v0")
    a(f"s_lshl_b32 s77, s{sA}, 9"); a(f"s_lshl_b32 s78, s{sB}, 9")
    a(f"v_add_u32 v{t1}, s78, v{t0}"); a(f"v_add_u32 v{t0}, s77, v{t0}")
    a("s_waitcnt vmcnt(0)")
    a("s_barrier")
    a(f"ds_read_b64 v[{t2}:{t3}], v{t0}"); a(f"ds_read_b64 v[{t4}:{t5}], v{t1}")
    a(f"buffer_load_dwordx4 v[{vQ}:{vQ+3}], v13, s[24:27], 0 offen")
    a(f"s_lshr_b32 s70, s{sCA}, 4"); a(f"s_lshr_b32 s71, s{sCB}, 4"); a(f"s_min_u32 s{sS}, s70, s71")
    a(f"s_and_b32 s79, s{sW}, 3")
    a("s_waitcnt lgkmcnt(0)")
    a(f"v_cmp_ne_u32 s[60:61], v{t2}, v{t4}"); a(f"v_cmp_ne_u32 s[62:63], v{t3}, v{t5}")
    a("s_ff1_i32_b64 s70, s[60:61]"); a("s_ff1_i32_b64 s71, s[62:63]")
    a("s_lshl_b32 s70, s70, 1"); a("s_lshl_b32 s71, s71, 1"); a("s_or_b32 s71, s71, 1")
    a("s_min_u32 s70, s70, s71"); a(f"s_min_u32 s{sS}, s{sS}, s70")
    a(f"s_lshl_b32 s70, s79, 2")
    a(f"s_sub_u32 s71, 12, s70")
    a(f"s_sub_u32 s87, s{sCA}, s70"); a(f"s_sub_u32 s88, s{sCB}, s71")
    a(f"s_add_u32 s85, s87, 15"); a(f"s_add_u32 s86, s88, 15")
    a(f"s_lshr_b32 s85, s85, 4"); a(f"s_lshr_b32 s86, s86, 4")
    a(f"s_sub_u32 s85, s85, s{sS}"); a(f"s_sub_u32 s86, s86, s{sS}")
    a(f"s_lshl_b32 s89, s70, 12"); a(f"s_lshl_b32 s90, s71, 12")
    a(f"s_lshl_b32 s72, s{sH}, 8"); a("s_add_u32 s89, s89, s72"); a("s_add_u32 s90, s90, s72")
    a(f"s_lshl_b32 s72, s{sS}, 4")
    a(f"s_cmp_ge_u32 s{sW}, 4")
    a(f"s_cselect_b32 s84, 0, s{sS}")
    a(f"s_cselect_b32 s85, s{sS}, s85")
    a(f"s_cselect_b32 s86, 0, s86")
    a(f"s_cselect_b32 s87, s72, s87")
    a(f"s_cselect_b32 s88, 0, s88")
    a(f"s_cselect_b32 s91, 0x10001, 1")
    a("s_add_u32 s92, s85, 3"); a("s_lshr_b32 s92, s92, 2")
    a("s_add_u32 s70, s86, 3"); a("s_lshr_b32 s70, s70, 2"); a(f"s_add_u32 s{sT}, s92, s70")
    a(f"v_cmp_gt_u32 vcc, s92, v0")
    a(f"v_subrev_u32 v{t0}, s92, v0")
    def sel(d, sa, sb):
        a(f"v_mov_b32 v{d}, {sb}"); a(f"v_mov_b32 v{t7}, {sa}"); a(f"v_cndmask_b32 v{d}, v{d}, v{t7}, vcc")
    a(f"v_mov_b32 v{t1}, s78"); a(f"v_mov_b32 v{t7}, s77")
    a(f"v_cndmask_b32 v{t0}, v{t0}, v0, vcc")
    a(f"v_cndmask_b32 v{t1}, v{t1}, v{t7}, vcc")
    a(f"v_lshlrev_b32 v{t0}, 2, v{t0}")
    a(f"v_add_u32 v{t2}, s84, v{t0}")
    a(f"v_lshl_add_u32 v{t1}, v{t2}, 2, v{t1}")
    a(f"ds_read2_b32 v[{vList[0]}:{vList[1]}], v{t1} offset0:0 offset1:1")
    a(f"ds_read2_b32 v[{vList[2]}:{vList[3]}], v{t1} offset0:2 offset1:3")
    sel(t3, "s85", "s86"); a(f"v_sub_u32 v{t3}, v{t3}, v{t0}")
    sel(t4, "s87", "s88"); a(f"v_lshlrev_b32 v{t2}, 4, v{t2}"); a(f"v_sub_u32 v{t4}, v{t4}, v{t2}")
    a(f"v_med3_i32 v{t4}, v{t4}, 0, 64")
    sel(t5, "s91", "0x10000"); a(f"v_mul_u32_u24 v{vPackL}, v{t4}, v{t5}")
    sel(t5, "s89", "s90")
    a(f"v_mov_b32 v{t6}, {OOB}")
    for j in range(4): a(f"v_cmp_lt_i32 s[{sMask[j]}:{sMask[j]+1}], {j}, v{t3}")
    a("s_waitcnt lgkmcnt(0)")
    for j in range(4): a(f"v_lshl_add_u32 v{vList[j]}, v{vList[j]}, 16, v{t5}")
    for j in range(4): a(f"v_cndmask_b32 v{vList[j]}, v{t6}, v{vList[j]}, s[{sMask[j]}:{sMask[j]+1}]")
    a(f"s_mov_b32 s{sTau}, 0")
    if stamp: a("s_memrealtime s[94:95]")
    a(f"s_cmp_eq_u32 s{sT}, 0"); a("s_cbranch_scc1 L_epi")
    if noshared: a(f"s_cmp_ge_u32 s{sW}, 4"); a("s_cbranch_scc1 L_epi")
    if nopriv: a(f"s_cmp_lt_u32 s{sW}, 4"); a("s_cbranch_scc1 L_epi")
    if klinear: a(f"v_mov_b32 v{vKoff}, v{vVoff}")
    a(f"s_cmp_ge_u32 s{sW}, 4"); a("s_cbranch_scc1 L_shared")

    def loop(tag, N, fl):
        dmax = (7+N)//8
        def issue(par, k):
            d, kk = divmod(k, 8)
            pp = (par+d) & 1
            r = RING + (pp*8+kk)*4
            srd_, vo = ("s[16:19]", vKoff) if kk < 4 else ("s[20:23]", vVoff)
            a(f"buffer_load_dwordx4 v[{r}:{r+3}], v{vo}, {srd_}, s{sSet[pp]+(kk&3)} offen{fl}")
        for d in range(dmax):
            for j in range(4): a(f"v_readlane_b32 s{sSet[d]+j}, v{vList[j]}, {d}")
        a("s_nop 4")
        for k in range(N): issue(0, k)
        for par in range(2):
            a(f"L_{tag}{par}:")
            a(f"s_add_u32 s{sTmp}, s{sTau}, {dmax}")
            a(f"v_readlane_b32 s{sPack}, v{vPackL}, s{sTau}")
            st = sSet[(par+dmax)&1]
            for j in range(4): a(f"v_readlane_b32 s{st+j}, v{vList[j]}, s{sTmp}")
            a(f"v_bfe_u32 v{vRem}, s{sPack}, v{vShift}, 16")
            a(f"s_add_u32 s{sTau}, s{sTau}, 1")
            for j in range(4): a(f"v_cmp_gt_u32 s[{sMask[j]}:{sMask[j]+1}], v{vRem}, v{vT[j]}")
            for j in range(4): a(f"v_cndmask_b32 v{vS[j]}, v{vNinf}, 0, s[{sMask[j]}:{sMask[j]+1}]")
            def dpp(j):
                for i in range(4):
                    a(f"v_fmac_f32_dpp v{vS[j]}, v{vD[j]+i}, v{vScale} quad_perm:[{i},{i},{i},{i}] row_mask:0xf bank_mask:0xf")
            for j in range(4):
                r = RING + (par*8+j)*4
                a(f"s_waitcnt vmcnt({N-1})")
                issue(par, j+N)
                a(f"v_mfma_f32_16x16x32_bf16 v[{vD[j]}:{vD[j]+3}], v[{r}:{r+3}], v[{vQ}:{vQ+3}], 0")
                if j == 2: a("s_nop 1")
                if j >= 2: dpp(j-2)
            dpp(2); dpp(3)
            a(f"v_max3_f32 v{vX}, v{vS[0]}, v{vS[1]}, v{vS[2]}")
            a(f"v_max3_f32 v{vX}, v{vX}, v{vS[3]}, v{vMx}")
            a(f"v_mov_b32 v{vY}, v{vX}"); a("s_nop 1")
            a(f"v_permlane16_swap_b32 v{vY}, v{vX}")
            a(f"v_max_f32 v{vX}, v{vX}, v{vY}")
            a(f"v_mov_b32 v{vY}, v{vX}"); a("s_nop 1")
            a(f"v_permlane32_swap_b32 v{vY}, v{vX}")
            a(f"v_max_f32 v{vX}, v{vX}, v{vY}")
            a(f"v_sub_f32 v{vAl}, v{vMx}, v{vX}")
            for j in range(4): a(f"v_sub_f32 v{vS[j]}, v{vS[j]}, v{vX}")
            a(f"v_exp_f32 v{vAl}, v{vAl}")
            for j in range(4): a(f"v_exp_f32 v{vS[j]}, v{vS[j]}")
            a(f"v_mov_b32 v{vMx}, v{vX}")
            for j in range(4): a(f"v_cvt_pk_bf16_f32 v{vD[j]}, v{vS[j]}, v{vS[j]}")
            for i in range(8): a(f"v_mul_f32 v{vOa+i}, v{vAl}, v{vOa+i}")
            for j in range(4):
                a(f"v_and_b32 v{vP+2+4*j}, v{vM0}, v{vD[j]}"); a(f"v_and_b32 v{vP+3+4*j}, v{vM1}, v{vD[j]}")
            a(f"v_fma_f32 v{vLs}, v{vLs}, v{vAl}, v{vS[0]}")
            a(f"v_add_f32 v{vS[1]}, v{vS[1]}, v{vS[2]}")
            a(f"v_add_f32 v{vLs}, v{vLs}, v{vS[3]}")
            a(f"v_add_f32 v{vLs}, v{vLs}, v{vS[1]}")
            for j in range(4):
                r = RING + (par*8+4+j)*4
                a(f"s_waitcnt vmcnt({N-1})")
                issue(par, 4+j+N)
                a(f"v_mfma_f32_16x16x32_bf16 v[{vOa}:{vOa+3}], v[{r}:{r+3}], v[{vP+2+4*j}:{vP+5+4*j}], v[{vOa}:{vOa+3}]")
                a(f"v_mfma_f32_16x16x32_bf16 v[{vOb}:{vOb+3}], v[{r}:{r+3}], v[{vP+4*j}:{vP+3+4*j}], v[{vOb}:{vOb+3}]")
            a(f"s_cmp_ge_u32 s{sTau}, s{sT}")
            if par == 0: a("s_cbranch_scc1 L_epi")
            else:
                a(f"s_cbranch_scc0 L_{tag}0"); a("s_branch L_epi")
    loop("p", NP, fp)
    a("L_shared:")
    loop("s", NS, fs)
    a("L_epi:")
    if stamp: a("s_memrealtime s[96:97]")
    a(f"v_mov_b32 v{vY}, v{vLs}")
    a(f"v_lshlrev_b32 v{t0}, 4, v0")
    a(f"s_mul_i32 s70, s{sW}, {WSTR}"); a(f"s_add_u32 s70, s70, {OB}")
    a(f"v_permlane16_swap_b32 v{vY}, v{vLs}")
    a(f"v_add_f32 v{vLs}, v{vLs}, v{vY}")
    a(f"v_mov_b32 v{vY}, v{vLs}")
    a(f"v_add_u32 v{t0}, s70, v{t0}")
    a(f"v_bfe_u32 v{t1}, v0, 2, 2")
    a(f"v_permlane32_swap_b32 v{vY}, v{vLs}")
    a(f"v_add_f32 v{vLs}, v{vLs}, v{vY}")
    a(f"s_lshl_b32 s71, s{sW}, 2"); a(f"s_add_u32 s71, s71, {MB}")
    a(f"v_lshl_add_u32 v{t1}, v{t1}, 5, s71")
    a(f"ds_write_b128 v{t0}, v[{vOa}:{vOa+3}]")
    a(f"ds_write_b128 v{t0}, v[{vOb}:{vOb+3}] offset:{ESTR}")
    a(f"ds_write2_b32 v{t1}, v{vMx}, v{vLs} offset0:0 offset1:32")
    a(f"s_lshr_b32 s70, s{sW}, 1"); a(f"s_and_b32 s71, s{sW}, 1")
    a(f"s_lshl_b32 s72, s70, 5"); a(f"s_add_u32 s72, s72, {MB}"); a(f"v_mov_b32 v{t2}, s72")
    a(f"s_lshl_b32 s72, s71, 9"); a(f"s_lshl_b32 s77, s70, 6"); a("s_add_u32 s72, s72, s77"); a(f"s_add_u32 s72, s72, {OB}")
    a(f"v_lshrrev_b32 v{t3}, 5, v0"); a(f"v_lshl_add_u32 v{t3}, v{t3}, 8, s72")
    a(f"v_and_b32 v{t4}, 3, v0"); a(f"v_lshl_add_u32 v{t3}, v{t4}, 4, v{t3}")
    a(f"v_bfe_u32 v{t4}, v0, 3, 2"); a(f"v_lshl_add_u32 v{t3}, v{t4}, 2, v{t3}")
    a(f"v_bfe_u32 v{t4}, v0, 2, 1"); a(f"v_mul_u32_u24 v{t4}, {ESTR}, v{t4}"); a(f"v_add_u32 v{t3}, v{t3}, v{t4}")
    a(f"s_cmp_ge_u32 s{sW}, 4"); a("s_cselect_b32 s72, s74, s73")
    a(f"s_and_b32 s70, s70, 1"); a("s_lshl_b32 s70, s70, 8"); a("s_lshl_b32 s71, s71, 7")
    a("s_add_u32 s72, s72, s70"); a("s_add_u32 s72, s72, s71")
    a(f"v_lshlrev_b32 v{t4}, 1, v0")
    a("s_waitcnt lgkmcnt(0)")
    a("s_barrier")
    E=160
    a(f"ds_read_b128 v[{E}:{E+3}], v{t2}"); a(f"ds_read_b128 v[{E+4}:{E+7}], v{t2} offset:16")
    a(f"ds_read_b128 v[{E+8}:{E+11}], v{t2} offset:128"); a(f"ds_read_b128 v[{E+12}:{E+15}], v{t2} offset:144")
    for w in range(8): a(f"ds_read_b32 v{E+16+w}, v{t3} offset:{w*WSTR}")
    a("s_waitcnt lgkmcnt(10)")
    a(f"v_max3_f32 v{vX}, v{E}, v{E+1}, v{E+2}"); a(f"v_max3_f32 v{vY}, v{E+3}, v{E+4}, v{E+5}")
    a(f"v_max3_f32 v{vX}, v{vX}, v{E+6}, v{E+7}"); a(f"v_max_f32 v{vX}, v{vX}, v{vY}")
    for w in range(8): a(f"v_sub_f32 v{E+w}, v{E+w}, v{vX}")
    for w in range(8): a(f"v_exp_f32 v{E+w}, v{E+w}")
    a("s_waitcnt lgkmcnt(8)")
    a(f"v_mul_f32 v{vX}, v{E}, v{E+8}")
    for w in range(1,8): a(f"v_fmac_f32 v{vX}, v{E+w}, v{E+8+w}")
    a(f"v_rcp_f32 v{vX}, v{vX}")
    a("s_waitcnt lgkmcnt(0)")
    a(f"v_mul_f32 v{vY}, v{E}, v{E+16}")
    for w in range(1,8): a(f"v_fmac_f32 v{vY}, v{E+w}, v{E+16+w}")
    a(f"v_mul_f32 v{vY}, v{vY}, v{vX}")
    a(f"v_cvt_pk_bf16_f32 v{vY}, v{vY}, v{vY}")
    a(f"buffer_store_short v{vY}, v{t4}, s[36:39], s72 offen")
    if stamp:
        a("s_memrealtime s[98:99]"); a("s_waitcnt lgkmcnt(0)")
        a(f"s_lshl_b32 s70, s2, 3"); a(f"s_add_u32 s70, s70, s{sW}"); a("s_lshl_b32 s70, s70, 5")
        a("s_getreg_b32 s83, hwreg(HW_REG_XCC_ID)")
        a("v_mov_b32 v10, s82"); a("v_mov_b32 v11, s94"); a("v_mov_b32 v12, s96"); a("v_mov_b32 v13, s98")
        a("v_mov_b32 v14, s70"); a("v_mov_b32 v16, s83"); a(f"v_mov_b32 v17, s{sT}")
        a("v_cmp_eq_u32 vcc, 0, v0"); a("s_and_saveexec_b64 s[34:35], vcc")
        a("global_store_dwordx4 v14, v[10:13], s[80:81]")
        a("global_store_dwordx2 v14, v[16:17], s[80:81] offset:16")
    if calib:
        a("L_cal:"); a("s_memrealtime s[98:99]"); a("s_waitcnt lgkmcnt(0)"); a("s_sub_u32 s98, s98, s82")
        a(f"s_cmp_lt_u32 s98, {calib}"); a("s_cbranch_scc1 L_cal")
    a("L_end:"); a("s_endpgm")
    hdr = open("ref_stub.s").read()
    top = hdr[:hdr.index("; @launch")]
    out = top + f"; @launch grid=(256,1,1) block=(512,1,1) lds={LDSZ}\n"
    out += f""".amdgcn_target "amdgcn-amd-amdhsa--gfx950"
.text
.globl {KNAME}
.p2align 8
.type {KNAME},@function
{KNAME}:
""" + "\n".join(("" if x.endswith(":") else "    ")+x for x in L) + f"""
.section .rodata,"a"
.p2align 6
.amdhsa_kernel {KNAME}
  .amdhsa_next_free_vgpr 192
  .amdhsa_next_free_sgpr 102
  .amdhsa_accum_offset 192
  .amdhsa_group_segment_fixed_size 0
  .amdhsa_kernarg_size 64
  .amdhsa_user_sgpr_count 2
  .amdhsa_user_sgpr_kernarg_segment_ptr 1
  .amdhsa_system_sgpr_workgroup_id_x 1
.end_amdhsa_kernel
"""
    return out
if __name__ == "__main__":
    kw = eval("dict(%s)" % (sys.argv[2] if len(sys.argv) > 2 else ""))
    open(sys.argv[1], "w").write(gen(**kw))
```

```python
import sys, math, struct
KNAME = "standalone__paged_block_table_kv_radixattention__sampling_kernel"
KVBYTES = 138412032
OOB = 0x40000000
def f2u(x): return struct.unpack('<I', struct.pack('<f', x))[0]
SC = f2u(math.log2(math.e)/math.sqrt(128.0))

def gen(NP=5, NM=12, tail=5, head=0, NSP=2, fp=" nt", fs=" nt", hmap=0, stamp=False, noshared=False, calib=0, sleep=32, prio=0, wake=4, onlyduty=False, DS=3, pre=2, trace=False, ptrace=False):
    L = []; a = L.append
    NWG = 256
    sW, sH, sP, sA, sB, sCA, sCB, sS, sT, sTau = 40,41,42,43,44,45,46,47,48,49
    sSet = [50, 54]; sPack = 58; sRole = 59; sMask = [60,62,64,66]; sTmp = 68
    sOutA, sOutB = 73, 74
    vKoff, vVoff, vM0, vM1, vShift, vScale, vNinf = 1,2,3,4,5,6,7
    vT = [8,9,10,11]; vList = [12,13,14,15]; vPackL = 16; vRem = 17
    vQ = 18; vOa = 22; vOb = 26; vMx, vLs, vAl, vX, vY = 30,31,32,33,34
    vS = [35,36,37,38]; vQoff = 39
    vD = [40,44,48]; vP = 52; vCtx = 62; vEff = 63
    RING = 64
    t = [64+i for i in range(40)]
    BT = 49152; SX = 65536; MLST = SX+64; LDSZ = MLST+512
    OB = 0; ESTR = 1088; WSTR = 2*ESTR; SH = OB+4*WSTR; MB = SH+NSP*2048; STG = 32768
    WSO = 0; WSML = 16*NSP*32*1024; WSZ = WSML + 16*NSP*64*8
    LG = NSP.bit_length()-1
    def srd(d, p, n):
        a(f"s_mov_b32 s{d}, s{p}"); a(f"s_mov_b32 s{d+1}, s{p+1}")
        a(f"s_mov_b32 s{d+2}, {n}"); a(f"s_mov_b32 s{d+3}, 0x20000")
    def st(n):
        if stamp: a(f"s_memrealtime s[{n}:{n+1}]")

    a(f"s_cmp_ge_u32 s2, {NWG}"); a("s_cbranch_scc1 L_end")
    a("s_load_dwordx8 s[4:11], s[0:1], 0")
    a("s_load_dwordx4 s[12:15], s[0:1], 32")
    a("s_load_dwordx4 s[76:79], s[0:1], 48")
    if stamp or calib: a("s_memrealtime s[82:83]")
    a("v_lshrrev_b32 v1, 6, v0")
    a("v_and_b32 v0, 63, v0")
    if hmap == 0:
        a(f"s_and_b32 s{sH}, s2, 15"); a(f"s_lshr_b32 s{sP}, s2, 4")
    elif hmap == 1:
        a(f"s_lshr_b32 s{sH}, s2, 4"); a(f"s_add_u32 s{sP}, s2, s{sH}"); a(f"s_and_b32 s{sP}, s{sP}, 15")
    a(f"v_readfirstlane_b32 s{sW}, v1")
    a(f"s_add_u32 s96, s{sP}, {NSP}"); a(f"s_sub_u32 s97, {31+NSP}, s{sP}"); a(f"s_sub_u32 s3, {2*NSP-1}, s{sP}")
    a(f"s_cmp_lt_u32 s{sP}, {NSP}")
    a(f"s_cselect_b32 s{sRole}, 1, 0")
    a(f"s_cselect_b32 s96, s{sP}, s96"); a(f"s_cselect_b32 s97, s3, s97")
    a(f"v_and_b32 v{t[0]}, 31, v0")
    a(f"v_lshrrev_b32 v{t[1]}, 5, v0"); a(f"v_and_b32 v{t[2]}, 15, v0")
    a(f"v_lshl_add_u32 v{t[1]}, v{t[1]}, 4, v{t[2]}")
    a(f"v_lshlrev_b32 v{t[2]}, 2, v{t[0]}"); a(f"v_lshlrev_b32 v{t[3]}, 2, v{t[1]}")
    a(f"v_lshlrev_b32 v{t[4]}, 4, v{t[0]}")
    a(f"s_lshl_b32 s{sTmp}, s{sW}, 12")
    a(f"v_lshl_add_u32 v{t[5]}, v0, 4, s{sTmp}")
    a("s_waitcnt lgkmcnt(0)")
    if ptrace: a("s_memrealtime s[100:101]"); a("s_waitcnt lgkmcnt(0)"); a("v_writelane_b32 v167, s100, 0")
    srd(32, 12, 128); srd(28, 10, 16384)
    a(f"buffer_load_dword v{vCtx}, v{t[2]}, s[32:35], 0 offen")
    a(f"buffer_load_dword v{t[6]}, v{t[3]}, s[32:35], 0 offen")
    R0 = t[8]; X = [t[12], t[16], t[20], t[24]]
    a(f"buffer_load_dwordx4 v[{R0}:{R0+3}], v{t[4]}, s[28:31], 0 offen")
    for i in range(4): a(f"buffer_load_dwordx4 v[{X[i]}:{X[i]+3}], v{t[5]}, s[28:31], 0 offen offset:{1024*i}")
    srd(16, 6, KVBYTES); srd(20, 8, KVBYTES); srd(24, 4, 262144); srd(36, 14, 262144)
    srd(84, 76, 256); srd(88, 78, WSZ)
    a(f"v_lshrrev_b32 v{vT[0]}, 4, v0")
    u0,u1 = t[28], t[29]
    a(f"v_and_b32 v{u0}, 15, v0"); a(f"v_lshlrev_b32 v{u0}, 4, v{u0}")
    a(f"v_lshl_add_u32 v{vVoff}, v{vT[0]}, 12, v{u0}")
    a(f"v_and_b32 v{u0}, 3, v0"); a(f"v_lshlrev_b32 v{u0}, 4, v{u0}")
    a(f"v_lshl_add_u32 v{u0}, v{vT[0]}, 6, v{u0}")
    a(f"v_bfe_u32 v{u1}, v0, 2, 2"); a(f"v_lshl_add_u32 v{vKoff}, v{u1}, 12, v{u0}")
    a(f"v_bfe_u32 v{u1}, v0, 2, 1"); a(f"v_lshl_add_u32 v{vQoff}, v{u1}, 8, v{u0}")
    a(f"v_and_b32 v{u1}, 1, v0"); a(f"v_lshlrev_b32 v{u1}, 4, v{u1}")
    a(f"v_mov_b32 v{vM0}, 0xffff"); a(f"v_lshlrev_b32 v{vM0}, v{u1}, v{vM0}")
    a(f"v_bfe_i32 v{u1}, v0, 1, 1")
    a(f"v_and_b32 v{vM1}, v{vM0}, v{u1}"); a(f"v_xor_b32 v{vM0}, v{vM0}, v{vM1}")
    a(f"v_and_b32 v{vShift}, 8, v0"); a(f"v_lshrrev_b32 v{vShift}, 1, v{vShift}")
    vSh = [vShift, vT[1], vT[2], vT[3]]
    for j in range(1,4): a(f"v_add_u32 v{vSh[j]}, {8*j}, v{vShift}")
    a(f"v_mov_b32 v{vScale}, 0x{SC:08x}"); a(f"v_mov_b32 v{vNinf}, 0xff800000")
    for i in range(8): a(f"v_mov_b32 v{vOa+i}, 0")
    a(f"v_mov_b32 v{vMx}, 0xf149f2ca"); a(f"v_mov_b32 v{vLs}, 0")
    for j in range(3): a(f"v_mov_b32 v{vP+4*j}, 0"); a(f"v_mov_b32 v{vP+4*j+1}, 0")
    if ptrace: a("s_memrealtime s[100:101]"); a("s_waitcnt lgkmcnt(0)"); a("v_writelane_b32 v167, s100, 1")
    a("s_waitcnt vmcnt(5)")
    if ptrace: a("s_memrealtime s[100:101]"); a("s_waitcnt lgkmcnt(0)"); a("v_writelane_b32 v167, s100, 2")
    ko, ks_, d, acc = t[30], t[31], t[32], t[33]
    a(f"v_add_u32 v{vEff}, -1, v{vCtx}"); a(f"v_add_u32 v{t[6]}, -1, v{t[6]}")
    a(f"v_min_u32 v{vEff}, 0x7ff, v{vEff}"); a(f"v_min_u32 v{t[6]}, 0x7ff, v{t[6]}")
    a(f"v_lshl_add_u32 v{ko}, v{t[6]}, 5, v{t[1]}"); a(f"v_lshl_add_u32 v{ks_}, v{vEff}, 5, v{t[0]}")
    a(f"v_add_u32 v{vEff}, 1, v{vEff}")
    a(f"v_sub_u32 v{d}, v{ko}, v{ks_}"); a(f"v_lshrrev_b32 v{acc}, 31, v{d}")
    for k in range(1,16):
        a(f"v_sub_u32_dpp v{d}, v{ko}, v{ks_} row_ror:{k} row_mask:0xf bank_mask:0xf")
        a(f"v_alignbit_b32 v{acc}, v{acc}, v{d}, 31")
    a(f"v_bcnt_u32_b32 v{acc}, v{acc}, 0"); a(f"v_mov_b32 v{d}, v{acc}")
    a("s_nop 1")
    a(f"v_permlane32_swap_b32 v{d}, v{acc}"); a(f"v_add_u32 v{acc}, v{d}, v{acc}")
    a(f"v_cmp_eq_u32 s[60:61], s96, v{acc}"); a(f"v_cmp_eq_u32 s[62:63], s97, v{acc}")
    a(f"v_cmp_eq_u32 s[64:65], 0, v{acc}")
    a(f"s_ff1_i32_b32 s{sA}, s60"); a(f"s_ff1_i32_b32 s{sB}, s62"); a("s_ff1_i32_b32 s69, s64")
    a(f"v_readlane_b32 s{sCA}, v{vEff}, s{sA}"); a(f"v_readlane_b32 s{sCB}, v{vEff}, s{sB}")
    a(f"v_readlane_b32 s{sS}, v{vEff}, s69")
    a(f"v_readlane_b32 s70, v{vCtx}, s{sA}"); a(f"v_readlane_b32 s71, v{vCtx}, s{sB}")
    if ptrace: a("s_memrealtime s[100:101]"); a("s_waitcnt lgkmcnt(0)"); a("v_writelane_b32 v167, s100, 3")
    a("s_waitcnt vmcnt(0)")
    if ptrace: a("s_memrealtime s[100:101]"); a("s_waitcnt lgkmcnt(0)"); a("v_writelane_b32 v167, s100, 4")
    a(f"v_xor_b32 v{acc}, v{X[0]}, v{R0}")
    for i in range(4):
        for c in range(4):
            if i == 0 and c == 0: continue
            a(f"v_bitop3_b32 v{acc}, v{acc}, v{X[i]+c}, v{R0+c} bitop3:0xf6")
    a(f"v_cmp_ne_u32 vcc, 0, v{acc}")
    a(f"s_lshl_b32 s72, s{sH}, 9")
    a(f"s_lshl_b32 s{sOutA}, s{sA}, 13"); a(f"s_lshl_b32 s{sOutB}, s{sB}, 13")
    a(f"s_add_u32 s{sOutA}, s{sOutA}, s72"); a(f"s_add_u32 s{sOutB}, s{sOutB}, s72")
    a("s_or_b32 s69, vcc_lo, vcc_hi"); a("s_ff1_i32_b32 s69, s69")
    a(f"s_lshr_b32 s{sS}, s{sS}, 6"); a(f"s_min_u32 s69, s69, s{sS}")
    a(f"s_cmp_ge_u32 s{sW}, 4"); a("s_cbranch_scc1 L_bar1")
    a(f"s_lshl_b32 s72, s{sW}, 2"); a(f"s_add_u32 s72, s72, {SX}")
    a(f"v_mov_b32 v{d}, s69"); a(f"v_mov_b32 v{ko}, s72")
    for i in range(4): a(f"ds_write_b128 v{t[5]}, v[{X[i]}:{X[i]+3}] offset:{BT+1024*i}")
    a(f"ds_write_b32 v{ko}, v{d}")
    if wake: a(f"v_mov_b32 v{ko}, {SX+16}"); a(f"ds_write_b32 v{ko}, v{ko}")
    a("L_bar1:")
    a("s_cmp_lt_i32 s70, 1"); a(f"s_cselect_b32 s70, {OOB}, s{sOutA}")
    a("s_cmp_lt_i32 s71, 1"); a(f"s_cselect_b32 s71, {OOB}, s{sOutB}")
    a(f"v_cmp_eq_u32 vcc, 0, v{vShift}")
    a(f"v_mov_b32 v{t[0]}, s71"); a(f"v_mov_b32 v{t[1]}, s70")
    a(f"v_cndmask_b32 v{t[0]}, v{t[0]}, v{t[1]}, vcc")
    a(f"v_add_u32 v{vQoff}, v{vQoff}, v{t[0]}")
    a(f"v_mov_b32 v{t[2]}, {SX}")
    a("s_waitcnt lgkmcnt(0)")
    if ptrace: a("s_memrealtime s[100:101]"); a("s_waitcnt lgkmcnt(0)"); a("v_writelane_b32 v167, s100, 5")
    a("s_barrier")
    if ptrace: a("s_memrealtime s[100:101]"); a("s_waitcnt lgkmcnt(0)"); a("v_writelane_b32 v167, s100, 6")
    a(f"ds_read_b128 v[{t[4]}:{t[7]}], v{t[2]}")
    a(f"s_cmp_ge_u32 s{sW}, 4"); a("s_cbranch_scc1 L_coll")
    if prio: a(f"s_setprio {prio}")
    a(f"buffer_load_dwordx4 v[{vQ}:{vQ+3}], v{vQoff}, s[24:27], 0 offen")
    a(f"s_lshl_b32 s70, s{sW}, 2"); a(f"s_sub_u32 s71, 12, s70")
    a(f"s_sub_u32 s94, s{sCA}, s70"); a(f"s_sub_u32 s95, s{sCB}, s71")
    a(f"s_add_u32 s92, s94, 15"); a(f"s_add_u32 s93, s95, 15")
    a(f"s_lshr_b32 s92, s92, 4"); a(f"s_lshr_b32 s93, s93, 4")
    a(f"s_lshl_b32 s70, s70, 12"); a(f"s_lshl_b32 s71, s71, 12")
    a(f"s_lshl_b32 s72, s{sH}, 8"); a("s_add_u32 s70, s70, s72"); a("s_add_u32 s71, s71, s72")
    a(f"s_lshl_b32 s60, s{sA}, 9"); a(f"s_lshl_b32 s61, s{sB}, 9")
    a("s_waitcnt lgkmcnt(0)")
    a(f"v_min3_u32 v{t[4]}, v{t[4]}, v{t[5]}, v{t[6]}"); a(f"v_min_u32 v{t[4]}, v{t[4]}, v{t[7]}")
    a("s_nop 0")
    a(f"v_readfirstlane_b32 s{sS}, v{t[4]}")
    a(f"s_lshr_b32 s{sS}, s{sS}, {LG}"); a(f"s_lshl_b32 s93x, s{sS}, 1".replace("s93x","s98")); a(f"s_lshl_b32 s{sS}, s{sS}, {LG+2}")
    a(f"s_sub_u32 s92, s92, s{sS}"); a(f"s_sub_u32 s93, s93, s{sS}")
    a(f"s_add_u32 s72, s92, s93")
    a(f"s_add_u32 s{sT}, s72, 3"); a(f"s_lshr_b32 s{sT}, s{sT}, 2")
    a(f"s_lshl_b32 s75, s{sS}, 2"); a("s_add_u32 s60, s60, s75"); a("s_add_u32 s61, s61, s75")
    a(f"s_lshl_b32 s75, s92, 2"); a("s_sub_u32 s61, s61, s75")
    a(f"s_lshl_b32 s75, s{sS}, 4"); a("s_sub_u32 s94, s94, s75"); a("s_sub_u32 s95, s95, s75")
    a(f"s_lshl_b32 s75, s92, 4"); a("s_add_u32 s95, s95, s75")
    ee = [t[8+j] for j in range(4)]; ad = [t[12+j] for j in range(4)]; rm = [128+j for j in range(4)]; qo = [t[20+j] for j in range(4)]
    a(f"v_lshlrev_b32 v{ee[0]}, 2, v0")
    for j in range(1,4): a(f"v_add_u32 v{ee[j]}, {j}, v{ee[0]}")
    a(f"v_mov_b32 v{t[0]}, s60"); a(f"v_mov_b32 v{t[1]}, s61")
    for j in range(4): a(f"v_cmp_gt_u32 s[{sMask[j]}:{sMask[j]+1}], s92, v{ee[j]}")
    for j in range(4):
        a(f"v_cndmask_b32 v{ad[j]}, v{t[1]}, v{t[0]}, s[{sMask[j]}:{sMask[j]+1}]")
    for j in range(4):
        a(f"v_lshl_add_u32 v{ad[j]}, v{ee[j]}, 2, v{ad[j]}")
        a(f"ds_read_b32 v{vList[j]}, v{ad[j]} offset:{BT}")
    a(f"v_mov_b32 v{t[0]}, s94"); a(f"v_mov_b32 v{t[1]}, s95"); a(f"v_mov_b32 v{t[2]}, s70"); a(f"v_mov_b32 v{t[3]}, s71")
    a(f"v_mov_b32 v{t[6]}, {OOB}")
    for j in range(4):
        a(f"v_cndmask_b32 v{rm[j]}, v{t[1]}, v{t[0]}, s[{sMask[j]}:{sMask[j]+1}]")
        a(f"v_cndmask_b32 v{qo[j]}, v{t[3]}, v{t[2]}, s[{sMask[j]}:{sMask[j]+1}]")
        a(f"v_cndmask_b32 v{132+j}, 16, 1, s[{sMask[j]}:{sMask[j]+1}]")
        a(f"v_mad_i32_i24 v{rm[j]}, v{ee[j]}, -16, v{rm[j]}")
    for j in range(4): a(f"v_cmp_gt_u32 s[{sMask[j]}:{sMask[j]+1}], s72, v{ee[j]}")
    a("s_waitcnt lgkmcnt(0)")
    for j in range(4): a(f"v_lshl_add_u32 v{vList[j]}, v{vList[j]}, 16, v{qo[j]}")
    for j in range(4): a(f"v_cndmask_b32 v{vList[j]}, v{t[6]}, v{vList[j]}, s[{sMask[j]}:{sMask[j]+1}]")
    st(94)
    def issue(par, k):
        dd, kk = divmod(k, 8); pp = (par+dd) & 1
        r = RING + (pp*8+kk)*4
        srd_, vo = ("s[16:19]", vKoff) if kk < 4 else ("s[20:23]", vVoff)
        a(f"buffer_load_dwordx4 v[{r}:{r+3}], v{vo}, {srd_}, s{sSet[pp]+(kk&3)} offen{fp}")
    def body(tag, N, par):
        dmax = (7+N)//8
        a(f"L_{tag}{par}:")
        a(f"s_add_u32 s{sTmp}, s{sTau}, {dmax}")
        a(f"v_readlane_b32 s{sPack}, v{vPackL}, s{sTau}")
        stt = sSet[(par+dmax)&1]
        for j in range(4): a(f"v_readlane_b32 s{stt+j}, v{vList[j]}, s{sTmp}")
        for j in range(4): a(f"v_bfe_u32 v{vS[j]}, s{sPack}, v{vSh[j]}, 4")
        if trace:
            a("s_memrealtime s[100:101]"); a("s_waitcnt lgkmcnt(0)"); a(f"s_mov_b32 m0, s{sTau}"); a(f"v_writelane_b32 v{vEff}, s100, m0")
        a(f"s_sub_u32 s69, s{sT}, s{sTau}")
        if wake: a(f"v_mov_b32 v{vX}, s69"); a(f"ds_write_b32 v{vQoff}, v{vX}")
        a(f"s_cmp_le_u32 s69, {tail}"); a("s_cselect_b64 vcc, -1, 0")
        if head: a(f"s_cmp_lt_u32 s{sTau}, {head}"); a("s_cselect_b64 vcc, -1, vcc")
        a(f"s_add_u32 s{sTau}, s{sTau}, 1")
        for j in range(4): a(f"v_cmp_gt_u32 s[{sMask[j]}:{sMask[j]+1}], v{vS[j]}, v{vT[0]}")
        for j in range(4): a(f"v_cndmask_b32 v{vS[j]}, v{vNinf}, 0, s[{sMask[j]}:{sMask[j]+1}]")
        def wait_issue(k):
            a("s_cbranch_vccnz 1"); a(f"s_waitcnt vmcnt({NP-1})")
            a(f"s_waitcnt vmcnt({N-1})"); issue(par, k+N)
        def dpp(j):
            for i in range(4):
                a(f"v_fmac_f32_dpp v{vS[j]}, v{vD[j%3]+i}, v{vScale} quad_perm:[{i},{i},{i},{i}] row_mask:0xf bank_mask:0xf")
        for j in range(4):
            r = RING + (par*8+j)*4
            wait_issue(j)
            a(f"v_mfma_f32_16x16x32_bf16 v[{vD[j%3]}:{vD[j%3]+3}], v[{r}:{r+3}], v[{vQ}:{vQ+3}], 0")
            if j == 2: a("s_nop 1")
            if j >= 2: dpp(j-2)
        dpp(2); dpp(3)
        a(f"v_max3_f32 v{vX}, v{vS[0]}, v{vS[1]}, v{vS[2]}")
        a(f"v_max3_f32 v{vX}, v{vX}, v{vS[3]}, v{vMx}")
        a(f"v_mov_b32 v{vY}, v{vX}"); a("s_nop 1")
        a(f"v_permlane16_swap_b32 v{vY}, v{vX}"); a(f"v_max_f32 v{vX}, v{vX}, v{vY}")
        a(f"v_mov_b32 v{vY}, v{vX}"); a("s_nop 1")
        a(f"v_permlane32_swap_b32 v{vY}, v{vX}"); a(f"v_max_f32 v{vX}, v{vX}, v{vY}")
        a(f"v_sub_f32 v{vAl}, v{vMx}, v{vX}")
        for j in range(4): a(f"v_sub_f32 v{vS[j]}, v{vS[j]}, v{vX}")
        a(f"v_exp_f32 v{vAl}, v{vAl}")
        for j in range(4): a(f"v_exp_f32 v{vS[j]}, v{vS[j]}")
        a(f"v_mov_b32 v{vMx}, v{vX}")
        pb = [vD[0]+j for j in range(4)]
        for j in range(4): a(f"v_cvt_pk_bf16_f32 v{pb[j]}, v{vS[j]}, v{vS[j]}")
        for i in range(8): a(f"v_mul_f32 v{vOa+i}, v{vAl}, v{vOa+i}")
        def ands(j):
            b = vP+2+4*(j&1)
            a(f"v_and_b32 v{b}, v{vM0}, v{pb[j]}"); a(f"v_and_b32 v{b+1}, v{vM1}, v{pb[j]}")
        ands(0); ands(1)
        a(f"v_fma_f32 v{vLs}, v{vLs}, v{vAl}, v{vS[0]}")
        a(f"v_add_f32 v{vS[1]}, v{vS[1]}, v{vS[2]}")
        a(f"v_add_f32 v{vLs}, v{vLs}, v{vS[3]}")
        a(f"v_add_f32 v{vLs}, v{vLs}, v{vS[1]}")
        for j in range(4):
            r = RING + (par*8+4+j)*4; b = vP+2+4*(j&1)
            wait_issue(4+j)
            a(f"v_mfma_f32_16x16x32_bf16 v[{vOa}:{vOa+3}], v[{r}:{r+3}], v[{b}:{b+3}], v[{vOa}:{vOa+3}]")
            a(f"v_mfma_f32_16x16x32_bf16 v[{vOb}:{vOb+3}], v[{r}:{r+3}], v[{b-2}:{b+1}], v[{vOb}:{vOb+3}]")
            if j < 2: ands(j+2)
    assert 8 < NM <= 15 and NP <= 8
    for dd in range(2):
        for j in range(4): a(f"v_readlane_b32 s{sSet[dd]+j}, v{vList[j]}, {dd}")
    a(f"s_cmp_eq_u32 s{sRole}, 0"); a(f"s_cselect_b32 s98, 0, s98")
    if noshared: a("s_mov_b32 s98, 0")
    a("s_cmp_lg_u32 s98, 0"); a("s_cbranch_scc1 L_shp")
    for k in range(NP): issue(0, k)
    if ptrace: a("s_memrealtime s[100:101]"); a("s_waitcnt lgkmcnt(0)"); a("v_writelane_b32 v167, s100, 7")
    a("L_shp:")
    rm2 = [vS[j] for j in range(4)]
    for j in range(4): a(f"v_med3_i32 v{rm2[j]}, v{128+j}, 0, 4")
    for j in range(4): a(f"v_mul_u32_u24 v{rm2[j]}, v{rm2[j]}, v{132+j}")
    a(f"v_lshl_or_b32 v{rm2[0]}, v{rm2[1]}, 8, v{rm2[0]}"); a(f"v_lshl_or_b32 v{rm2[2]}, v{rm2[3]}, 8, v{rm2[2]}")
    a(f"v_lshl_or_b32 v{vPackL}, v{rm2[2]}, 16, v{rm2[0]}")
    a("s_cbranch_scc1 L_shwg")
    a("L_main:")
    if wake: a(f"v_mov_b32 v{vQoff}, {SX+16}")
    if onlyduty: a(f"s_mov_b32 s{sT}, 0")
    a(f"s_mov_b32 s{sTau}, 0")
    a(f"s_cmp_eq_u32 s{sT}, 0"); a("s_cbranch_scc1 L_epi")
    for k in range(NP, NM):
        if not head: a(f"s_waitcnt vmcnt({NP-1})")
        issue(0, k)
    for par in range(2):
        body("p", NM, par)
        a(f"s_cmp_ge_u32 s{sTau}, s{sT}")
        if par == 0: a("s_cbranch_scc1 L_epi")
        else: a(f"s_cbranch_scc0 L_p0")
    a("L_epi:")
    st(96)
    if wake: a(f"v_mov_b32 v{vX}, 0"); a(f"ds_write_b32 v{vQoff}, v{vX}")
    e = [vD[0]+i for i in range(12)]
    a(f"v_mov_b32 v{vY}, v{vLs}")
    a(f"s_mul_i32 s70, s{sW}, {WSTR}"); a(f"s_add_u32 s70, s70, {OB}")
    a(f"v_lshl_add_u32 v{e[0]}, v0, 4, s70")
    a(f"v_permlane16_swap_b32 v{vY}, v{vLs}"); a(f"v_add_f32 v{vLs}, v{vLs}, v{vY}")
    a(f"v_mov_b32 v{vY}, v{vLs}")
    a(f"s_lshl_b32 s71, s{sW}, 2"); a(f"s_add_u32 s71, s71, {MB}")
    a(f"v_bfe_u32 v{e[1]}, v0, 2, 2")
    a(f"v_permlane32_swap_b32 v{vY}, v{vLs}"); a(f"v_add_f32 v{vLs}, v{vLs}, v{vY}")
    a(f"v_lshl_add_u32 v{e[1]}, v{e[1]}, 5, s71")
    a(f"ds_write_b128 v{e[0]}, v[{vOa}:{vOa+3}]")
    a(f"ds_write_b128 v{e[0]}, v[{vOb}:{vOb+3}] offset:{ESTR}")
    a(f"ds_write2_b32 v{e[1]}, v{vMx}, v{vLs} offset0:0 offset1:32")
    a(f"s_lshl_b32 s72, s{sW}, 5"); a(f"s_add_u32 s72, s72, {MB}"); a(f"v_mov_b32 v{e[2]}, s72")
    a(f"s_lshl_b32 s72, s{sW}, 6"); a(f"s_add_u32 s72, s72, {OB}")
    a(f"v_lshl_add_u32 v{e[3]}, v{vT[0]}, 8, s72")
    a(f"v_and_b32 v{e[4]}, 1, v0"); a(f"v_lshl_add_u32 v{e[3]}, v{e[4]}, 5, v{e[3]}")
    a(f"v_bfe_u32 v{e[4]}, v0, 2, 2"); a(f"v_lshl_add_u32 v{e[3]}, v{e[4]}, 2, v{e[3]}")
    a(f"v_bfe_u32 v{e[4]}, v0, 1, 1"); a(f"v_mul_u32_u24 v{e[4]}, {ESTR}, v{e[4]}"); a(f"v_add_u32 v{e[3]}, v{e[3]}, v{e[4]}")
    for w in range(1,4): a(f"v_add_u32 v{e[3+w]}, {w*WSTR}, v{e[3]}")
    a(f"s_lshl_b32 s72, s{sW}, 9"); a(f"s_add_u32 s72, s72, {SH}"); a(f"v_lshl_add_u32 v{e[7]}, v0, 3, s72")
    a(f"s_cmp_ge_u32 s{sW}, 2"); a(f"s_cselect_b32 s72, s{sOutB}, s{sOutA}")
    a(f"s_and_b32 s70, s{sW}, 1"); a("s_lshl_b32 s70, s70, 8"); a("s_add_u32 s72, s72, s70")
    a(f"v_lshlrev_b32 v{e[8]}, 2, v0")
    a("s_waitcnt vmcnt(0) lgkmcnt(0)")
    a("s_barrier")
    NPART = 4 + (0 if noshared else NSP)
    E = RING
    a(f"ds_read_b128 v[{E}:{E+3}], v{e[2]}"); a(f"ds_read_b128 v[{E+4}:{E+7}], v{e[2]} offset:16")
    a(f"ds_read_b128 v[{E+8}:{E+11}], v{e[2]} offset:128"); a(f"ds_read_b128 v[{E+12}:{E+15}], v{e[2]} offset:144")
    for w in range(4): a(f"ds_read2_b32 v[{E+16+2*w}:{E+17+2*w}], v{e[3+w]} offset0:0 offset1:4")
    for s in range(NPART-4): a(f"ds_read_b64 v[{E+24+2*s}:{E+25+2*s}], v{e[7]} offset:{2048*s}")
    a(f"s_waitcnt lgkmcnt({NPART+2})")
    a(f"v_max3_f32 v{vX}, v{E}, v{E+1}, v{E+2}")
    i = 3
    while i < NPART:
        if i+1 < NPART: a(f"v_max3_f32 v{vX}, v{vX}, v{E+i}, v{E+i+1}"); i += 2
        else: a(f"v_max_f32 v{vX}, v{vX}, v{E+i}"); i += 1
    for w in range(NPART): a(f"v_sub_f32 v{E+w}, v{E+w}, v{vX}")
    for w in range(NPART): a(f"v_exp_f32 v{E+w}, v{E+w}")
    a(f"s_waitcnt lgkmcnt({NPART})")
    a(f"v_mul_f32 v{vX}, v{E}, v{E+8}")
    for w in range(1,NPART): a(f"v_fmac_f32 v{vX}, v{E+w}, v{E+8+w}")
    a(f"v_rcp_f32 v{vX}, v{vX}")
    a("s_waitcnt lgkmcnt(0)")
    a(f"v_mul_f32 v{vY}, v{E}, v{E+16}"); a(f"v_mul_f32 v{vAl}, v{E}, v{E+17}")
    for w in range(1,NPART):
        a(f"v_fmac_f32 v{vY}, v{E+w}, v{E+16+2*w}"); a(f"v_fmac_f32 v{vAl}, v{E+w}, v{E+17+2*w}")
    a(f"v_mul_f32 v{vY}, v{vY}, v{vX}"); a(f"v_mul_f32 v{vAl}, v{vAl}, v{vX}")
    a(f"v_cvt_pk_bf16_f32 v{vY}, v{vY}, v{vAl}")
    a(f"buffer_store_dword v{vY}, v{e[8]}, s[36:39], s72 offen")
    a("s_branch L_fin")

    a("L_coll:")
    a("s_waitcnt lgkmcnt(0)")
    a(f"v_min3_u32 v{t[4]}, v{t[4]}, v{t[5]}, v{t[6]}"); a(f"v_min_u32 v{t[4]}, v{t[4]}, v{t[7]}")
    a("v_lshlrev_b32 v1, 4, v0")
    a(f"v_readfirstlane_b32 s{sS}, v{t[4]}")
    a("v_and_b32 v4, 3, v0"); a("v_lshlrev_b32 v4, 5, v4"); a("v_lshrrev_b32 v5, 2, v0"); a("v_lshl_add_u32 v4, v5, 2, v4")
    a(f"v_add_u32 v4, {MB+16}, v4")
    a(f"s_lshr_b32 s{sS}, s{sS}, {LG}"); a(f"s_lshl_b32 s98, s{sS}, 1")
    st(94)
    if not noshared:
        a("s_cmp_lg_u32 s98, 0"); a("s_cbranch_scc1 L_c1")
        for i in range(8*NSP): a(f"v_mov_b32 v{64+i}, 0")
        a("v_mov_b32 v6, 0xf149f2ca"); a("v_mov_b32 v7, 0")
        a(f"v_cmp_gt_u32 vcc, {4*NSP}, v0"); a("s_and_saveexec_b64 s[60:61], vcc")
        a("s_branch L_c3")
        a("L_c1:")
        a(f"s_cmp_eq_u32 s{sRole}, 0"); a("s_cbranch_scc1 L_c2")
        lK = [8,9,10,11]; lV = [12,13,14,15]; lL = 16
        a(f"s_mul_i32 s71, s98, s{sP}"); a("s_lshl_b32 s71, s71, 3")
        a(f"v_lshl_add_u32 v20, v0, 3, s71")
        a(f"ds_read_b64 v[{lL}:{lL+1}], v20 offset:{BT}")
        a("v_and_b32 v21, 15, v0"); a("v_lshrrev_b32 v22, 4, v0")
        for q in range(4):
            a(f"v_add_u32 v23, {4*q}, v22")
            a(f"v_lshlrev_b32 v25, 12, v23")
            if q: a(f"v_subrev_u32 v25, {1024*q}, v25")
            a(f"v_xor_b32 v24, v23, v21"); a(f"v_lshl_add_u32 v{lK[q]}, v24, 4, v25")
            a(f"v_and_b32 v24, 7, v23"); a("v_lshlrev_b32 v24, 1, v24"); a("v_xor_b32 v24, v24, v21"); a(f"v_lshl_add_u32 v{lV[q]}, v24, 4, v25")
        a(f"s_lshl_b32 s70, s{sH}, 8")
        a("s_waitcnt lgkmcnt(0)")
        a(f"v_lshl_add_u32 v{lL}, v{lL}, 16, s70"); a(f"v_lshl_add_u32 v{lL+1}, v{lL+1}, 16, s70")
        a("s_mov_b32 s72, 0")
        a("s_mov_b32 s99, 0")
        def lstage():
            a(f"v_readlane_b32 s50, v{lL}, s72"); a(f"v_readlane_b32 s51, v{lL+1}, s72")
            a("s_and_b32 s75, s72, 3"); a("s_lshl_b32 s75, s75, 14"); a("s_add_u32 s72, s72, 1")
            for b in range(2):
                for (srd_, vo, off) in (("s[16:19]", lK, 0), ("s[20:23]", lV, 8192)):
                    a(f"s_add_u32 m0, s75, {off+4096*b}"); a("s_nop 0")
                    for q in range(4): a(f"buffer_load_dwordx4 v{vo[q]}, {srd_}, s{50+b} offen offset:{1024*q}{fs} lds")
        a("L_lp:")
        lstage()
        a(f"s_min_u32 s71, s98, {DS}"); a("s_cmp_lt_u32 s72, s71"); a("s_cbranch_scc1 L_lp")
        a("L_ll:")
        a("s_sub_u32 s71, s72, s99")
        for dd in range(DS, 1, -1):
            a(f"s_cmp_eq_u32 s71, {dd}"); a(f"s_cbranch_scc1 L_lw{dd}")
        a("s_waitcnt vmcnt(0)")
        for dd in range(2, DS+1):
            a(f"L_lw{dd}:"); a(f"s_waitcnt vmcnt({16*(dd-1)})")
        a("s_barrier")
        a("s_add_u32 s99, s99, 1")
        a("s_cmp_ge_u32 s72, s98"); a("s_cbranch_scc1 L_ln")
        lstage()
        a("L_ln:")
        a("s_cmp_lt_u32 s99, s98"); a("s_cbranch_scc1 L_ll")
        a(f"s_mul_i32 s70, s{sH}, {NSP}"); a(f"s_add_u32 s70, s70, s{sP}")
        a(f"s_lshl_b32 s71, s70, 15")
        a("v_lshlrev_b32 v23, 4, v22"); a("v_lshl_add_u32 v23, v21, 9, v23")
        a("v_lshlrev_b32 v24, 3, v0")
        a(f"v_add_u32 v25, {MLST}, v24")
        a("s_barrier"); a("s_barrier")
        a(f"ds_read_b64 v[26:27], v25")
        for w in range(4):
            for dt in range(8): a(f"ds_read_b128 v[{64+32*(w&1)+4*dt}:{67+32*(w&1)+4*dt}], v1 offset:{STG+8192*w+1024*dt}")
            for dt in range(8):
                a(f"s_waitcnt lgkmcnt({7-dt})")
                a(f"buffer_store_dwordx4 v[{64+32*(w&1)+4*dt}:{67+32*(w&1)+4*dt}], v23, s[88:91], s71 offen offset:{64*dt} sc1")
            a("s_add_u32 s71, s71, 8192")
            if w == 1: a("s_waitcnt vmcnt(8)")
            if w == 2: a("s_waitcnt vmcnt(8)")
        a(f"s_lshl_b32 s72, s70, 9"); a(f"s_add_u32 s72, s72, {WSML}")
        a("buffer_store_dwordx2 v[26:27], v24, s[88:91], s72 offen sc1")
        a("s_lshl_b32 s70, s70, 2"); a("v_mov_b32 v2, 1")
        a("s_waitcnt vmcnt(0)")
        a("s_mov_b64 exec, 1")
        a("buffer_store_dword v2, off, s[84:87], s70 sc1")
        a("s_mov_b64 exec, -1")
        if stamp: a("s_memrealtime s[100:101]")
        a("L_c2:")
        if wake:
            a(f"v_mov_b32 v2, {SX+16}")
            a("L_c4:"); a("s_sleep 8"); a("ds_read_b32 v3, v2"); a("s_waitcnt lgkmcnt(0)"); a("v_readfirstlane_b32 s71, v3")
            a(f"s_cmp_gt_u32 s71, {wake}"); a("s_cbranch_scc1 L_c4")
        a(f"s_mul_i32 s70, s{sH}, {4*NSP}")
        a("L_poll:")
        ld = {1:"dword v64", 2:"dwordx2 v[64:65]", 4:"dwordx4 v[64:67]"}[NSP]
        a(f"buffer_load_{ld}, off, s[84:87], s70 sc1")
        a("s_waitcnt vmcnt(0)")
        for s in range(1,NSP): a(f"v_and_b32 v64, v64, v{64+s}")
        a("s_nop 0"); a("v_readfirstlane_b32 s71, v64")
        a("s_cmp_lg_u32 s71, 0"); a("s_cbranch_scc1 L_ready")
        a(f"s_sleep {sleep}"); a("s_branch L_poll")
        a("L_ready:")
        a(f"s_mul_i32 s70, s{sH}, {NSP*32768}")
        a(f"s_lshl_b32 s71, s{sA}, 10"); a(f"s_lshl_b32 s72, s{sB}, 10")
        a("s_add_u32 s71, s71, s70"); a("s_add_u32 s72, s72, s70")
        for s in range(NSP):
            a(f"buffer_load_dwordx4 v[{64+8*s}:{67+8*s}], v1, s[88:91], s71 offen sc1")
            a(f"buffer_load_dwordx4 v[{68+8*s}:{71+8*s}], v1, s[88:91], s72 offen sc1")
            if s+1 < NSP: a("s_add_u32 s71, s71, 32768"); a("s_add_u32 s72, s72, 32768")
        a(f"v_mov_b32 v2, s{sB}"); a(f"v_mov_b32 v3, s{sA}")
        a("v_and_b32 v6, 2, v0"); a("v_cmp_eq_u32 vcc, 0, v6")
        a("v_and_b32 v6, 1, v0"); a("s_nop 0")
        a("v_cndmask_b32 v2, v2, v3, vcc")
        a("v_lshl_add_u32 v2, v2, 1, v6"); a("v_lshl_add_u32 v2, v5, 6, v2"); a("v_lshlrev_b32 v2, 3, v2")
        a(f"s_mul_i32 s70, s{sH}, {NSP*512}"); a(f"s_add_u32 s70, s70, {WSML}")
        a(f"v_cmp_gt_u32 vcc, {4*NSP}, v0"); a("s_and_saveexec_b64 s[60:61], vcc")
        a("buffer_load_dwordx2 v[6:7], v2, s[88:91], s70 offen sc1")
        a("s_waitcnt vmcnt(0)")
        a("L_c3:")
        a("ds_write2_b32 v4, v6, v7 offset0:0 offset1:32")
        a("s_mov_b64 exec, s[60:61]")
        for s in range(2*NSP): a(f"ds_write_b128 v1, v[{64+4*s}:{67+4*s}] offset:{SH+1024*s}")
    st(96)
    a("s_waitcnt lgkmcnt(0)")
    a("s_barrier")
    a("s_branch L_fin")

    a("L_shwg:")
    wKa = [26,27,28,29]; wVa = [30+i for i in range(8)]
    wMx,wLs,wAl,wX,wY = 40,41,42,43,39
    wQ = 44; wP = 60; wO = 96; wF = 128; wD = 160; u = [128+i for i in range(10)]
    sTs = 98; sTa = 99
    a(f"v_and_b32 v{u[0]}, 15, v0")
    g_ = vT[0]
    a(f"s_lshl_b32 s70, s{sW}, 3")
    a(f"v_lshrrev_b32 v{u[2]}, 1, v{u[0]}"); a(f"v_add_u32 v{u[2]}, s70, v{u[2]}")
    a(f"v_lshlrev_b32 v{u[3]}, 2, v{u[2]}")
    a(f"ds_bpermute_b32 v{u[3]}, v{u[3]}, v{vCtx}")
    a(f"v_and_b32 v{u[4]}, 1, v0"); a(f"v_lshlrev_b32 v{u[4]}, 8, v{u[4]}")
    a(f"v_lshl_add_u32 v{u[4]}, v{g_}, 4, v{u[4]}"); a(f"v_lshl_add_u32 v{u[4]}, v{u[2]}, 13, v{u[4]}")
    a(f"v_mov_b32 v{u[5]}, {OOB}")
    a(f"s_lshl_b32 s71, s{sH}, 9")
    a("s_waitcnt lgkmcnt(0)")
    a(f"v_cmp_gt_i32 vcc, 1, v{u[3]}")
    a(f"v_xor_b32 v{u[6]}, v{g_}, v{u[0]}"); a(f"v_lshlrev_b32 v{u[6]}, 4, v{u[6]}")
    a(f"v_cndmask_b32 v{u[4]}, v{u[4]}, v{u[5]}, vcc")
    for k in range(4): a(f"buffer_load_dwordx4 v[{wQ+4*k}:{wQ+4*k+3}], v{u[4]}, s[24:27], s71 offen offset:{64*k}")
    a(f"v_lshl_add_u32 v{wKa[0]}, v{u[0]}, 8, v{u[6]}")
    for k in range(1,4): a(f"v_xor_b32 v{wKa[k]}, {64*k}, v{wKa[0]}")
    a(f"v_bfe_u32 v{u[6]}, v0, 2, 2"); a(f"v_lshl_add_u32 v{u[6]}, v{g_}, 2, v{u[6]}")
    a(f"v_and_b32 v{u[7]}, 7, v{u[6]}"); a(f"v_lshlrev_b32 v{u[7]}, 5, v{u[7]}")
    a(f"v_lshl_add_u32 v{u[7]}, v{u[6]}, 8, v{u[7]}")
    a(f"v_and_b32 v{u[6]}, 3, v0"); a(f"v_lshl_add_u32 v{wVa[0]}, v{u[6]}, 3, v{u[7]}")
    for k in range(1,8): a(f"v_xor_b32 v{wVa[k]}, {32*k}, v{wVa[0]}")
    for i in range(32): a(f"v_mov_b32 v{wO+i}, 0")
    a(f"v_mov_b32 v{wMx}, 0xf149f2ca"); a(f"v_mov_b32 v{wLs}, 0")
    a(f"s_mov_b32 s92, 0x{SC:08x}")
    a(f"s_mov_b32 s{sTa}, 0")
    a(f"s_sub_u32 s93, s{sTs}, {pre}"); a("s_cselect_b32 s93, 0, s93")
    a("s_waitcnt vmcnt(0)")
    fq = lambda k,b: wF+8*k+4*b
    for sl in range(4):
        base = sl*16384
        a(f"L_sh{sl}:")
        a(f"s_cmp_eq_u32 s{sTa}, s93")
        a("s_barrier")
        for k in range(4):
            for b in range(2):
                a(f"ds_read_b128 v[{fq(k,b)}:{fq(k,b)+3}], v{wKa[k]} offset:{base+4096*b}")
        a(f"s_cbranch_scc1 L_shx{sl}")
        a(f"L_shy{sl}:")
        a(f"s_add_u32 s{sTa}, s{sTa}, 1")
        for k in range(4):
            a(f"s_waitcnt lgkmcnt({6-2*k+4*k})")
            for b in range(2):
                c = "0" if k == 0 else f"v[{wD+4*b}:{wD+4*b+3}]"
                a(f"v_mfma_f32_16x16x32_bf16 v[{wD+4*b}:{wD+4*b+3}], v[{fq(k,b)}:{fq(k,b)+3}], v[{wQ+4*k}:{wQ+4*k+3}], {c}")
            for b in range(2):
                dt = 2*k+b
                for bb in range(2):
                    r = fq(k,b)+2*bb
                    a(f"ds_read_b64_tr_b16 v[{r}:{r+1}], v{wVa[dt]} offset:{base+8192+4096*bb}")
        a("s_nop 2")
        a(f"v_max3_f32 v{wX}, v{wD}, v{wD+1}, v{wD+2}")
        a(f"v_max3_f32 v{wX}, v{wX}, v{wD+3}, v{wD+4}")
        a(f"v_max3_f32 v{wY}, v{wD+5}, v{wD+6}, v{wD+7}"); a(f"v_max_f32 v{wX}, v{wX}, v{wY}")
        a(f"v_mov_b32 v{wY}, v{wX}"); a("s_nop 1")
        a(f"v_permlane16_swap_b32 v{wY}, v{wX}"); a(f"v_max_f32 v{wX}, v{wX}, v{wY}")
        a(f"v_mov_b32 v{wY}, v{wX}"); a("s_nop 1")
        a(f"v_permlane32_swap_b32 v{wY}, v{wX}"); a(f"v_max_f32 v{wX}, v{wX}, v{wY}")
        a(f"v_mul_f32 v{wX}, s92, v{wX}"); a(f"v_max_f32 v{wX}, v{wX}, v{wMx}")
        a(f"v_sub_f32 v{wAl}, v{wMx}, v{wX}")
        for i in range(8): a(f"v_fma_f32 v{wD+i}, v{wD+i}, s92, -v{wX}")
        a(f"v_exp_f32 v{wAl}, v{wAl}")
        for i in range(8): a(f"v_exp_f32 v{wD+i}, v{wD+i}")
        a(f"v_mov_b32 v{wMx}, v{wX}")
        for i in range(4): a(f"v_cvt_pk_bf16_f32 v{wP+i}, v{wD+2*i}, v{wD+2*i+1}")
        def omul(dt):
            for i in range(4): a(f"v_mul_f32 v{wO+4*dt+i}, v{wAl}, v{wO+4*dt+i}")
        omul(0); omul(1)
        a(f"v_fma_f32 v{wLs}, v{wLs}, v{wAl}, v{wD}")
        a("s_waitcnt lgkmcnt(0)")
        for dt in range(8):
            r = fq(dt>>1, dt&1)
            a(f"v_mfma_f32_16x16x32_bf16 v[{wO+4*dt}:{wO+4*dt+3}], v[{r}:{r+3}], v[{wP}:{wP+3}], v[{wO+4*dt}:{wO+4*dt+3}]")
            if dt+2 < 8: omul(dt+2)
            if dt < 7: a(f"v_add_f32 v{wLs}, v{wLs}, v{wD+dt+1}")
        a(f"s_cmp_ge_u32 s{sTa}, s{sTs}")
        if sl < 3: a("s_cbranch_scc1 L_shout")
        else: a("s_cbranch_scc0 L_sh0")
    a("L_shout:")
    a("s_barrier")
    a(f"v_mov_b32 v{wY}, v{wLs}")
    a(f"s_lshl_b32 s72, s{sW}, 13"); a(f"s_add_u32 s72, s72, {STG}")
    a(f"v_lshl_add_u32 v{wD+1}, v0, 4, s72")
    a(f"v_permlane16_swap_b32 v{wY}, v{wLs}"); a(f"v_add_f32 v{wLs}, v{wLs}, v{wY}")
    a(f"v_mov_b32 v{wY}, v{wLs}")
    a(f"v_and_b32 v{wD}, 15, v0")
    a(f"s_lshl_b32 s72, s{sW}, 7"); a(f"s_add_u32 s72, s72, {MLST}")
    a(f"v_permlane32_swap_b32 v{wY}, v{wLs}"); a(f"v_add_f32 v{wLs}, v{wLs}, v{wY}")
    a(f"v_lshl_add_u32 v{wD}, v{wD}, 3, s72")
    for dt in range(8): a(f"ds_write_b128 v{wD+1}, v[{wO+4*dt}:{wO+4*dt+3}] offset:{1024*dt}")
    a(f"ds_write_b64 v{wD}, v[{wMx}:{wMx+1}]")
    for i in range(8): a(f"v_mov_b32 v{vOa+i}, 0")
    a(f"v_mov_b32 v{vMx}, 0xf149f2ca"); a(f"v_mov_b32 v{vLs}, 0")
    for j in range(3): a(f"v_mov_b32 v{vP+4*j}, 0"); a(f"v_mov_b32 v{vP+4*j+1}, 0")
    a("s_waitcnt lgkmcnt(0)")
    a("s_barrier")
    if stamp: a("s_memrealtime s[100:101]")
    a("s_branch L_main")
    for sl in range(4):
        a(f"L_shx{sl}:")
        for k in range(NP): issue(0, k)
        a(f"s_branch L_shy{sl}")
    a("L_fin:")
    if ptrace: vEff = 167
    if trace or ptrace:
        a("s_mov_b64 exec, -1")
        a(f"s_mul_i32 s70, s2, 5"); a(f"s_add_u32 s70, s70, s{sW}"); a("s_lshl_b32 s70, s70, 8"); a(f"s_add_u32 s70, s70, {1<<23}")
        a("v_lshl_add_u32 v14, v0, 2, s70")
        a(f"global_store_dword v14, v{vEff}, s[78:79]")
    if stamp:
        a("s_mov_b64 exec, 1")
        a("s_memrealtime s[98:99]"); a("s_waitcnt lgkmcnt(0)")
        a(f"s_mul_i32 s70, s2, 5"); a(f"s_add_u32 s70, s70, s{sW}"); a("s_lshl_b32 s70, s70, 5"); a(f"s_add_u32 s70, s70, {1<<22}")
        a("s_getreg_b32 s83, hwreg(HW_REG_XCC_ID)")
        a(f"s_cmp_ge_u32 s{sW}, 4"); a(f"s_cselect_b32 s71, 1, 0"); a(f"s_lshl_b32 s72, s{sRole}, 1"); a("s_add_u32 s71, s71, s72"); a("s_add_u32 s71, s71, 0x7700")
        a("v_mov_b32 v18, s100"); a("v_mov_b32 v19, s2")
        a("v_mov_b32 v10, s82"); a("v_mov_b32 v11, s94"); a("v_mov_b32 v12, s96"); a("v_mov_b32 v13, s98")
        a("v_mov_b32 v14, s70"); a("v_mov_b32 v16, s83"); a(f"v_mov_b32 v17, s71")
        a("global_store_dwordx4 v14, v[10:13], s[78:79]")
        a("global_store_dwordx4 v14, v[16:19], s[78:79] offset:16")
    if calib:
        a("L_cal:"); a("s_memrealtime s[98:99]"); a("s_waitcnt lgkmcnt(0)"); a("s_sub_u32 s98, s98, s82")
        a(f"s_cmp_lt_u32 s98, {calib}"); a("s_cbranch_scc1 L_cal")
    a("L_end:"); a("s_endpgm")
    hdr = open("ref_stub.s").read()
    top = hdr[:hdr.index("; @launch")]
    out = top + f"; @launch grid=({NWG},1,1) block=(320,1,1) lds={LDSZ}\n"
    out += f""".amdgcn_target "amdgcn-amd-amdhsa--gfx950"
.text
.globl {KNAME}
.p2align 8
.type {KNAME},@function
{KNAME}:
""" + "\n".join(("" if x.endswith(":") else "    ")+x for x in L) + f"""
.section .rodata,"a"
.p2align 6
.amdhsa_kernel {KNAME}
  .amdhsa_next_free_vgpr 168
  .amdhsa_next_free_sgpr 102
  .amdhsa_accum_offset 168
  .amdhsa_group_segment_fixed_size 0
  .amdhsa_kernarg_size 64
  .amdhsa_user_sgpr_count 2
  .amdhsa_user_sgpr_kernarg_segment_ptr 1
  .amdhsa_system_sgpr_workgroup_id_x 1
.end_amdhsa_kernel
"""
    return out
if __name__ == "__main__":
    kw = eval("dict(%s)" % (sys.argv[2] if len(sys.argv) > 2 else ""))
    open(sys.argv[1], "w").write(gen(**kw))
```

```python
import sys, math, struct
KNAME = "standalone__paged_block_table_kv_radixattention__sampling_kernel"
KVBYTES = 138412032
OOB = 0x40000000
def f2u(x): return struct.unpack('<I', struct.pack('<f', x))[0]
SC = f2u(math.log2(math.e)/math.sqrt(128.0))

def gen(NP=5, NM=14, tail=5, head=0, NLO=4, NHI=6, ctl=(), csleep=8, xmask=0, fb=None, tpoll=None, tsleep=32, prot=0, hcls=None, hlev='H', htail=None, tailh=0, wbl=0, inv=0, cfl=' sc1', noml=0, noO=0, dlev='M', dtail=None, nst=4, samedst=0, sfl=' sc1', sgap=0, nopoll=0, nocoll=0, nostore=0, hrot=0, NSP=2, fp=" nt", fs=" nt", hmap=0, stamp=False, noshared=False, calib=0, sleep=32, prio=0, wake=3, onlyduty=False, DS=3, pre=2, trace=False, ptrace=False):
    L = []; a = L.append
    usemode = bool(ctl) or fb is not None or dlev != 'M' or dtail is not None or hcls is not None
    NWG = 256
    sW, sH, sP, sA, sB, sCA, sCB, sS, sT, sTau = 40,41,42,43,44,45,46,47,48,49
    sSet = [50, 54]; sPack = 58; sRole = 59; sMask = [60,62,64,66]; sTmp = 68
    sOutA, sOutB = 73, 74
    vKoff, vVoff, vM0, vM1, vShift, vScale, vNinf = 1,2,3,4,5,6,7
    vT = [8,9,10,11]; vList = [12,13,14,15]; vPackL = 16; vMode = 17
    vQ = 18; vOa = 22; vOb = 26; vMx, vLs, vAl, vX, vY = 30,31,32,33,34
    vS = [35,36,37,38]; vQoff = 39
    vD = [40,44,48]; vP = 52; vCtx = 62; vEff = 63
    RING = 64
    t = [64+i for i in range(40)]
    BT = 49152; SX = 65536; MLST = SX+64; LDSZ = MLST+512
    OB = 0; ESTR = 1088; WSTR = 2*ESTR; SH = OB+4*WSTR; MB = SH+NSP*1024; STG = 16384; RSTR = 272
    WSO = 0; WSML = 16*NSP*16*1024; WSZ = WSML + 16*NSP*64*8
    LG = NSP.bit_length()-1
    def srd(d, p, n):
        a(f"s_mov_b32 s{d}, s{p}"); a(f"s_mov_b32 s{d+1}, s{p+1}")
        a(f"s_mov_b32 s{d+2}, {n}"); a(f"s_mov_b32 s{d+3}, 0x20000")
    def st(n):
        if stamp: a(f"s_memrealtime s[{n}:{n+1}]")

    a(f"s_cmp_ge_u32 s2, {NWG}"); a("s_cbranch_scc1 L_end")
    if xmask: a("s_and_b32 s3, s2, 7"); a(f"s_lshr_b32 s3, {xmask}, s3"); a("s_bitcmp0_b32 s3, 0"); a("s_cbranch_scc1 L_end")
    a("s_load_dwordx8 s[4:11], s[0:1], 0")
    a("s_load_dwordx4 s[12:15], s[0:1], 32")
    a("s_load_dwordx4 s[76:79], s[0:1], 48")
    if stamp or calib: a("s_memrealtime s[82:83]")
    a("v_lshrrev_b32 v1, 6, v0")
    a("v_and_b32 v0, 63, v0")
    if hmap == 0:
        if hrot: a(f"s_add_u32 s3, s2, {hrot}"); a(f"s_and_b32 s{sH}, s3, 15")
        else: a(f"s_and_b32 s{sH}, s2, 15")
        a(f"s_lshr_b32 s{sP}, s2, 4")
    elif hmap == 1:
        a(f"s_lshr_b32 s{sH}, s2, 4"); a(f"s_add_u32 s{sP}, s2, s{sH}"); a(f"s_and_b32 s{sP}, s{sP}, 15")
    if prot:
        a(f"s_add_u32 s{sP}, s{sP}, {prot}"); a(f"s_and_b32 s{sP}, s{sP}, 15")
    a(f"v_readfirstlane_b32 s{sW}, v1")
    a(f"s_add_u32 s96, s{sP}, {NSP}"); a(f"s_sub_u32 s97, {31+NSP}, s{sP}"); a(f"s_sub_u32 s3, {2*NSP-1}, s{sP}")
    a(f"s_cmp_lt_u32 s{sP}, {NSP}")
    a(f"s_cselect_b32 s{sRole}, 1, 0")
    a(f"s_cselect_b32 s96, s{sP}, s96"); a(f"s_cselect_b32 s97, s3, s97")
    a(f"v_and_b32 v{t[0]}, 31, v0")
    a(f"v_lshrrev_b32 v{t[1]}, 5, v0"); a(f"v_and_b32 v{t[2]}, 15, v0")
    a(f"v_lshl_add_u32 v{t[1]}, v{t[1]}, 4, v{t[2]}")
    a(f"v_lshlrev_b32 v{t[2]}, 2, v{t[0]}"); a(f"v_lshlrev_b32 v{t[3]}, 2, v{t[1]}")
    a(f"v_lshlrev_b32 v{t[4]}, 4, v{t[0]}")
    a(f"s_lshl_b32 s{sTmp}, s{sW}, 12")
    a(f"v_lshl_add_u32 v{t[5]}, v0, 4, s{sTmp}")
    a("s_waitcnt lgkmcnt(0)")
    if ptrace: a("s_memrealtime s[100:101]"); a("s_waitcnt lgkmcnt(0)"); a("v_writelane_b32 v167, s100, 0")
    srd(32, 12, 128); srd(28, 10, 16384)
    a(f"buffer_load_dword v{vCtx}, v{t[2]}, s[32:35], 0 offen")
    a(f"buffer_load_dword v{t[6]}, v{t[3]}, s[32:35], 0 offen")
    R0 = t[8]; X = [t[12], t[16], t[20], t[24]]
    a(f"buffer_load_dwordx4 v[{R0}:{R0+3}], v{t[4]}, s[28:31], 0 offen")
    for i in range(4): a(f"buffer_load_dwordx4 v[{X[i]}:{X[i]+3}], v{t[5]}, s[28:31], 0 offen offset:{1024*i}")
    srd(16, 6, KVBYTES); srd(20, 8, KVBYTES); srd(24, 4, 262144); srd(36, 14, 262144)
    srd(84, 76, 256); srd(88, 78, WSZ)
    a(f"v_lshrrev_b32 v{vT[0]}, 4, v0")
    u0,u1 = t[28], t[29]
    a(f"v_and_b32 v{u0}, 15, v0"); a(f"v_lshlrev_b32 v{u0}, 4, v{u0}")
    a(f"v_lshl_add_u32 v{vVoff}, v{vT[0]}, 12, v{u0}")
    a(f"v_and_b32 v{u0}, 3, v0"); a(f"v_lshlrev_b32 v{u0}, 4, v{u0}")
    a(f"v_lshl_add_u32 v{u0}, v{vT[0]}, 6, v{u0}")
    a(f"v_bfe_u32 v{u1}, v0, 2, 2"); a(f"v_lshl_add_u32 v{vKoff}, v{u1}, 12, v{u0}")
    a(f"v_bfe_u32 v{u1}, v0, 2, 1"); a(f"v_lshl_add_u32 v{vQoff}, v{u1}, 8, v{u0}")
    a(f"v_and_b32 v{u1}, 1, v0"); a(f"v_lshlrev_b32 v{u1}, 4, v{u1}")
    a(f"v_mov_b32 v{vM0}, 0xffff"); a(f"v_lshlrev_b32 v{vM0}, v{u1}, v{vM0}")
    a(f"v_bfe_i32 v{u1}, v0, 1, 1")
    a(f"v_and_b32 v{vM1}, v{vM0}, v{u1}"); a(f"v_xor_b32 v{vM0}, v{vM0}, v{vM1}")
    a(f"v_and_b32 v{vShift}, 8, v0"); a(f"v_lshrrev_b32 v{vShift}, 1, v{vShift}")
    vSh = [vShift, vT[1], vT[2], vT[3]]
    for j in range(1,4): a(f"v_add_u32 v{vSh[j]}, {8*j}, v{vShift}")
    a(f"v_mov_b32 v{vScale}, 0x{SC:08x}"); a(f"v_mov_b32 v{vNinf}, 0xff800000")
    for i in range(8): a(f"v_mov_b32 v{vOa+i}, 0")
    a(f"v_mov_b32 v{vMx}, 0xf149f2ca"); a(f"v_mov_b32 v{vLs}, 0")
    for j in range(3): a(f"v_mov_b32 v{vP+4*j}, 0"); a(f"v_mov_b32 v{vP+4*j+1}, 0")
    if ptrace: a("s_memrealtime s[100:101]"); a("s_waitcnt lgkmcnt(0)"); a("v_writelane_b32 v167, s100, 1")
    a("s_waitcnt vmcnt(5)")
    if ptrace: a("s_memrealtime s[100:101]"); a("s_waitcnt lgkmcnt(0)"); a("v_writelane_b32 v167, s100, 2")
    ko, ks_, d, acc = t[30], t[31], t[32], t[33]
    a(f"v_add_u32 v{vEff}, -1, v{vCtx}"); a(f"v_add_u32 v{t[6]}, -1, v{t[6]}")
    a(f"v_min_u32 v{vEff}, 0x7ff, v{vEff}"); a(f"v_min_u32 v{t[6]}, 0x7ff, v{t[6]}")
    a(f"v_lshl_add_u32 v{ko}, v{t[6]}, 5, v{t[1]}"); a(f"v_lshl_add_u32 v{ks_}, v{vEff}, 5, v{t[0]}")
    a(f"v_add_u32 v{vEff}, 1, v{vEff}")
    a(f"v_sub_u32 v{d}, v{ko}, v{ks_}"); a(f"v_lshrrev_b32 v{acc}, 31, v{d}")
    for k in range(1,16):
        a(f"v_sub_u32_dpp v{d}, v{ko}, v{ks_} row_ror:{k} row_mask:0xf bank_mask:0xf")
        a(f"v_alignbit_b32 v{acc}, v{acc}, v{d}, 31")
    a(f"v_bcnt_u32_b32 v{acc}, v{acc}, 0"); a(f"v_mov_b32 v{d}, v{acc}")
    a("s_nop 1")
    a(f"v_permlane32_swap_b32 v{d}, v{acc}"); a(f"v_add_u32 v{acc}, v{d}, v{acc}")
    a(f"v_cmp_eq_u32 s[60:61], s96, v{acc}"); a(f"v_cmp_eq_u32 s[62:63], s97, v{acc}")
    a(f"v_cmp_eq_u32 s[64:65], 0, v{acc}")
    a(f"s_ff1_i32_b32 s{sA}, s60"); a(f"s_ff1_i32_b32 s{sB}, s62"); a("s_ff1_i32_b32 s69, s64")
    a(f"v_readlane_b32 s{sCA}, v{vEff}, s{sA}"); a(f"v_readlane_b32 s{sCB}, v{vEff}, s{sB}")
    a(f"v_readlane_b32 s{sS}, v{vEff}, s69")
    a(f"v_readlane_b32 s70, v{vCtx}, s{sA}"); a(f"v_readlane_b32 s71, v{vCtx}, s{sB}")
    if ptrace: a("s_memrealtime s[100:101]"); a("s_waitcnt lgkmcnt(0)"); a("v_writelane_b32 v167, s100, 3")
    a("s_waitcnt vmcnt(0)")
    if ptrace: a("s_memrealtime s[100:101]"); a("s_waitcnt lgkmcnt(0)"); a("v_writelane_b32 v167, s100, 4")
    a(f"v_xor_b32 v{acc}, v{X[0]}, v{R0}")
    for i in range(4):
        for c in range(4):
            if i == 0 and c == 0: continue
            a(f"v_bitop3_b32 v{acc}, v{acc}, v{X[i]+c}, v{R0+c} bitop3:0xf6")
    a(f"v_cmp_ne_u32 vcc, 0, v{acc}")
    a(f"s_lshl_b32 s72, s{sH}, 9")
    a(f"s_lshl_b32 s{sOutA}, s{sA}, 13"); a(f"s_lshl_b32 s{sOutB}, s{sB}, 13")
    a(f"s_add_u32 s{sOutA}, s{sOutA}, s72"); a(f"s_add_u32 s{sOutB}, s{sOutB}, s72")
    a("s_or_b32 s69, vcc_lo, vcc_hi"); a("s_ff1_i32_b32 s69, s69")
    a(f"s_lshr_b32 s{sS}, s{sS}, 6"); a(f"s_min_u32 s69, s69, s{sS}")
    a(f"s_cmp_ge_u32 s{sW}, 4"); a("s_cbranch_scc1 L_bar1")
    a(f"s_lshl_b32 s72, s{sW}, 2"); a(f"s_add_u32 s72, s72, {SX}")
    code = {"L":0x200, "M":0, "H":0x100, "X":0x300}
    a(f"s_cmp_eq_u32 s{sRole}, 0"); a(f"s_cselect_b32 s75, {tail}, {code[dlev]|(tail if dtail is None else dtail)}")
    if hcls is not None:
        a(f"s_lshr_b32 s3, {hcls}, s{sH}"); a("s_bitcmp1_b32 s3, 0"); a(f"s_cselect_b32 s75, {code[hlev]|(tail if htail is None else htail)}, s75")
    a(f"v_mov_b32 v{d}, s69"); a(f"v_mov_b32 v{ko}, s72")
    for i in range(4): a(f"ds_write_b128 v{t[5]}, v[{X[i]}:{X[i]+3}] offset:{BT+1024*i}")
    a(f"ds_write_b32 v{ko}, v{d}")
    a(f"v_mov_b32 v{ko}, {SX+16}"); a(f"v_mov_b32 v{vMode}, s75"); a(f"ds_write2_b32 v{ko}, v{ko}, v{vMode} offset0:0 offset1:1")
    a("L_bar1:")
    a("s_cmp_lt_i32 s70, 1"); a(f"s_cselect_b32 s70, {OOB}, s{sOutA}")
    a("s_cmp_lt_i32 s71, 1"); a(f"s_cselect_b32 s71, {OOB}, s{sOutB}")
    a(f"v_cmp_eq_u32 vcc, 0, v{vShift}")
    a(f"v_mov_b32 v{t[0]}, s71"); a(f"v_mov_b32 v{t[1]}, s70")
    a(f"v_cndmask_b32 v{t[0]}, v{t[0]}, v{t[1]}, vcc")
    a(f"v_add_u32 v{vQoff}, v{vQoff}, v{t[0]}")
    a(f"v_mov_b32 v{t[2]}, {SX}")
    a("s_waitcnt lgkmcnt(0)")
    if ptrace: a("s_memrealtime s[100:101]"); a("s_waitcnt lgkmcnt(0)"); a("v_writelane_b32 v167, s100, 5")
    a("s_barrier")
    if ptrace: a("s_memrealtime s[100:101]"); a("s_waitcnt lgkmcnt(0)"); a("v_writelane_b32 v167, s100, 6")
    a(f"ds_read_b128 v[{t[4]}:{t[7]}], v{t[2]}")
    a(f"s_cmp_ge_u32 s{sW}, 4"); a("s_cbranch_scc1 L_coll")
    if prio: a(f"s_setprio {prio}")
    a(f"buffer_load_dwordx4 v[{vQ}:{vQ+3}], v{vQoff}, s[24:27], 0 offen")
    a(f"s_lshl_b32 s70, s{sW}, 2"); a(f"s_sub_u32 s71, 12, s70")
    a(f"s_sub_u32 s94, s{sCA}, s70"); a(f"s_sub_u32 s95, s{sCB}, s71")
    a(f"s_add_u32 s92, s94, 15"); a(f"s_add_u32 s93, s95, 15")
    a(f"s_lshr_b32 s92, s92, 4"); a(f"s_lshr_b32 s93, s93, 4")
    a(f"s_lshl_b32 s70, s70, 12"); a(f"s_lshl_b32 s71, s71, 12")
    a(f"s_lshl_b32 s72, s{sH}, 8"); a("s_add_u32 s70, s70, s72"); a("s_add_u32 s71, s71, s72")
    a(f"s_lshl_b32 s60, s{sA}, 9"); a(f"s_lshl_b32 s61, s{sB}, 9")
    a("s_waitcnt lgkmcnt(0)")
    a(f"v_min3_u32 v{t[4]}, v{t[4]}, v{t[5]}, v{t[6]}"); a(f"v_min_u32 v{t[4]}, v{t[4]}, v{t[7]}")
    a("s_nop 0")
    a(f"v_readfirstlane_b32 s{sS}, v{t[4]}")
    a(f"s_lshr_b32 s{sS}, s{sS}, {LG}"); a(f"s_lshl_b32 s93x, s{sS}, 1".replace("s93x","s98")); a(f"s_lshl_b32 s{sS}, s{sS}, {LG+2}")
    a(f"s_sub_u32 s92, s92, s{sS}"); a(f"s_sub_u32 s93, s93, s{sS}")
    a(f"s_add_u32 s72, s92, s93")
    a(f"s_add_u32 s{sT}, s72, 3"); a(f"s_lshr_b32 s{sT}, s{sT}, 2")
    a(f"s_lshl_b32 s75, s{sS}, 2"); a("s_add_u32 s60, s60, s75"); a("s_add_u32 s61, s61, s75")
    a(f"s_lshl_b32 s75, s92, 2"); a("s_sub_u32 s61, s61, s75")
    a(f"s_lshl_b32 s75, s{sS}, 4"); a("s_sub_u32 s94, s94, s75"); a("s_sub_u32 s95, s95, s75")
    a(f"s_lshl_b32 s75, s92, 4"); a("s_add_u32 s95, s95, s75")
    ee = [t[8+j] for j in range(4)]; ad = [t[12+j] for j in range(4)]; rm = [128+j for j in range(4)]; qo = [t[20+j] for j in range(4)]
    a(f"v_lshlrev_b32 v{ee[0]}, 2, v0")
    for j in range(1,4): a(f"v_add_u32 v{ee[j]}, {j}, v{ee[0]}")
    a(f"v_mov_b32 v{t[0]}, s60"); a(f"v_mov_b32 v{t[1]}, s61")
    for j in range(4): a(f"v_cmp_gt_u32 s[{sMask[j]}:{sMask[j]+1}], s92, v{ee[j]}")
    for j in range(4):
        a(f"v_cndmask_b32 v{ad[j]}, v{t[1]}, v{t[0]}, s[{sMask[j]}:{sMask[j]+1}]")
    for j in range(4):
        a(f"v_lshl_add_u32 v{ad[j]}, v{ee[j]}, 2, v{ad[j]}")
        a(f"ds_read_b32 v{vList[j]}, v{ad[j]} offset:{BT}")
    a(f"v_mov_b32 v{t[0]}, s94"); a(f"v_mov_b32 v{t[1]}, s95"); a(f"v_mov_b32 v{t[2]}, s70"); a(f"v_mov_b32 v{t[3]}, s71")
    a(f"v_mov_b32 v{t[6]}, {OOB}")
    for j in range(4):
        a(f"v_cndmask_b32 v{rm[j]}, v{t[1]}, v{t[0]}, s[{sMask[j]}:{sMask[j]+1}]")
        a(f"v_cndmask_b32 v{qo[j]}, v{t[3]}, v{t[2]}, s[{sMask[j]}:{sMask[j]+1}]")
        a(f"v_cndmask_b32 v{132+j}, 16, 1, s[{sMask[j]}:{sMask[j]+1}]")
        a(f"v_mad_i32_i24 v{rm[j]}, v{ee[j]}, -16, v{rm[j]}")
    for j in range(4): a(f"v_cmp_gt_u32 s[{sMask[j]}:{sMask[j]+1}], s72, v{ee[j]}")
    a("s_waitcnt lgkmcnt(0)")
    for j in range(4): a(f"v_lshl_add_u32 v{vList[j]}, v{vList[j]}, 16, v{qo[j]}")
    for j in range(4): a(f"v_cndmask_b32 v{vList[j]}, v{t[6]}, v{vList[j]}, s[{sMask[j]}:{sMask[j]+1}]")
    st(94)
    def issue(par, k):
        dd, kk = divmod(k, 8); pp = (par+dd) & 1
        r = RING + (pp*8+kk)*4
        srd_, vo = ("s[16:19]", vKoff) if kk < 4 else ("s[20:23]", vVoff)
        a(f"buffer_load_dwordx4 v[{r}:{r+3}], v{vo}, {srd_}, s{sSet[pp]+(kk&3)} offen{fp}")
    def body(tag, N, par):
        dmax = (7+N)//8
        a(f"L_{tag}{par}:")
        a(f"s_add_u32 s{sTmp}, s{sTau}, {dmax}")
        a(f"v_readlane_b32 s{sPack}, v{vPackL}, s{sTau}")
        stt = sSet[(par+dmax)&1]
        for j in range(4): a(f"v_readlane_b32 s{stt+j}, v{vList[j]}, s{sTmp}")
        for j in range(4): a(f"v_bfe_u32 v{vS[j]}, s{sPack}, v{vSh[j]}, 4")
        if trace:
            a("s_memrealtime s[100:101]"); a("s_waitcnt lgkmcnt(0)"); a(f"s_mov_b32 m0, s{sTau}"); a(f"v_writelane_b32 v{vEff}, s100, m0")
        a(f"s_sub_u32 s69, s{sT}, s{sTau}")
        if usemode:
            a("s_waitcnt lgkmcnt(0)"); a(f"v_readfirstlane_b32 s70, v{vMode}")
            a(f"v_mov_b32 v{vX}, s69"); a(f"ds_write_b32 v{vQoff}, v{vX}"); a(f"ds_read_b32 v{vMode}, v{vQoff} offset:4")
            a("s_and_b32 s71, s70, 0xff"); a("s_cmp_le_u32 s69, s71"); a("s_cselect_b32 s70, 0x300, s70")
            a("s_bitcmp1_b32 s70, 8"); a("s_cselect_b64 vcc, -1, 0")
            a(f"s_add_u32 s{sTau}, s{sTau}, 1")
            a("s_bitcmp1_b32 s70, 9")
        else:
            a(f"v_mov_b32 v{vX}, s69"); a(f"ds_write_b32 v{vQoff}, v{vX}")
            a(f"s_cmp_le_u32 s69, {max(tail,tailh)}"); a("s_cselect_b64 vcc, -1, 0")
            if head: a(f"s_cmp_lt_u32 s{sTau}, {head}"); a("s_cselect_b64 vcc, -1, vcc")
            a(f"s_add_u32 s{sTau}, s{sTau}, 1")
            if tailh: a(f"s_cmp_le_u32 s69, {tail}")
        for j in range(4): a(f"v_cmp_gt_u32 s[{sMask[j]}:{sMask[j]+1}], v{vS[j]}, v{vT[0]}")
        for j in range(4): a(f"v_cndmask_b32 v{vS[j]}, v{vNinf}, 0, s[{sMask[j]}:{sMask[j]+1}]")
        def wait_issue(k):
            if usemode:
                a("s_cbranch_vccnz 3"); a("s_cbranch_scc0 1"); a(f"s_waitcnt vmcnt({NLO-1})"); a(f"s_waitcnt vmcnt({NP-1})")
                a("s_cbranch_scc1 1"); a(f"s_waitcnt vmcnt({NHI-1})")
            else:
                a("s_cbranch_vccnz 1"); a(f"s_waitcnt vmcnt({NP-1})")
                if tailh: a("s_cbranch_scc1 1"); a(f"s_waitcnt vmcnt({NHI-1})")
            a(f"s_waitcnt vmcnt({N-1})"); issue(par, k+N)
        def dpp(j):
            for i in range(4):
                a(f"v_fmac_f32_dpp v{vS[j]}, v{vD[j%3]+i}, v{vScale} quad_perm:[{i},{i},{i},{i}] row_mask:0xf bank_mask:0xf")
        for j in range(4):
            r = RING + (par*8+j)*4
            wait_issue(j)
            a(f"v_mfma_f32_16x16x32_bf16 v[{vD[j%3]}:{vD[j%3]+3}], v[{r}:{r+3}], v[{vQ}:{vQ+3}], 0")
            if j == 2: a("s_nop 1")
            if j >= 2: dpp(j-2)
        dpp(2); dpp(3)
        a(f"v_max3_f32 v{vX}, v{vS[0]}, v{vS[1]}, v{vS[2]}")
        a(f"v_max3_f32 v{vX}, v{vX}, v{vS[3]}, v{vMx}")
        a(f"v_mov_b32 v{vY}, v{vX}"); a("s_nop 1")
        a(f"v_permlane16_swap_b32 v{vY}, v{vX}"); a(f"v_max_f32 v{vX}, v{vX}, v{vY}")
        a(f"v_mov_b32 v{vY}, v{vX}"); a("s_nop 1")
        a(f"v_permlane32_swap_b32 v{vY}, v{vX}"); a(f"v_max_f32 v{vX}, v{vX}, v{vY}")
        a(f"v_sub_f32 v{vAl}, v{vMx}, v{vX}")
        for j in range(4): a(f"v_sub_f32 v{vS[j]}, v{vS[j]}, v{vX}")
        a(f"v_exp_f32 v{vAl}, v{vAl}")
        for j in range(4): a(f"v_exp_f32 v{vS[j]}, v{vS[j]}")
        a(f"v_mov_b32 v{vMx}, v{vX}")
        pb = [vD[0]+j for j in range(4)]
        for j in range(4): a(f"v_cvt_pk_bf16_f32 v{pb[j]}, v{vS[j]}, v{vS[j]}")
        for i in range(8): a(f"v_mul_f32 v{vOa+i}, v{vAl}, v{vOa+i}")
        def ands(j):
            b = vP+2+4*(j&1)
            a(f"v_and_b32 v{b}, v{vM0}, v{pb[j]}"); a(f"v_and_b32 v{b+1}, v{vM1}, v{pb[j]}")
        ands(0); ands(1)
        a(f"v_fma_f32 v{vLs}, v{vLs}, v{vAl}, v{vS[0]}")
        a(f"v_add_f32 v{vS[1]}, v{vS[1]}, v{vS[2]}")
        a(f"v_add_f32 v{vLs}, v{vLs}, v{vS[3]}")
        a(f"v_add_f32 v{vLs}, v{vLs}, v{vS[1]}")
        for j in range(4):
            r = RING + (par*8+4+j)*4; b = vP+2+4*(j&1)
            wait_issue(4+j)
            a(f"v_mfma_f32_16x16x32_bf16 v[{vOa}:{vOa+3}], v[{r}:{r+3}], v[{b}:{b+3}], v[{vOa}:{vOa+3}]")
            a(f"v_mfma_f32_16x16x32_bf16 v[{vOb}:{vOb+3}], v[{r}:{r+3}], v[{b-2}:{b+1}], v[{vOb}:{vOb+3}]")
            if j < 2: ands(j+2)
    assert 8 < NM <= 15 and NP <= 8
    for dd in range(2):
        for j in range(4): a(f"v_readlane_b32 s{sSet[dd]+j}, v{vList[j]}, {dd}")
    a(f"s_cmp_eq_u32 s{sRole}, 0"); a(f"s_cselect_b32 s98, 0, s98")
    if noshared: a("s_mov_b32 s98, 0")
    a("s_cmp_lg_u32 s98, 0"); a("s_cbranch_scc1 L_shp")
    for k in range(NP): issue(0, k)
    if ptrace: a("s_memrealtime s[100:101]"); a("s_waitcnt lgkmcnt(0)"); a("v_writelane_b32 v167, s100, 7")
    a("L_shp:")
    rm2 = [vS[j] for j in range(4)]
    for j in range(4): a(f"v_med3_i32 v{rm2[j]}, v{128+j}, 0, 4")
    for j in range(4): a(f"v_mul_u32_u24 v{rm2[j]}, v{rm2[j]}, v{132+j}")
    a(f"v_lshl_or_b32 v{rm2[0]}, v{rm2[1]}, 8, v{rm2[0]}"); a(f"v_lshl_or_b32 v{rm2[2]}, v{rm2[3]}, 8, v{rm2[2]}")
    a(f"v_lshl_or_b32 v{vPackL}, v{rm2[2]}, 16, v{rm2[0]}")
    a("s_cbranch_scc1 L_shwg")
    a("L_main:")
    a(f"v_mov_b32 v{vQoff}, {SX+16}")
    if onlyduty: a(f"s_mov_b32 s{sT}, 0")
    a(f"s_mov_b32 s{sTau}, 0")
    a(f"s_cmp_eq_u32 s{sT}, 0"); a("s_cbranch_scc1 L_epi")
    for k in range(NP, NM):
        if not head: a(f"s_waitcnt vmcnt({NP-1})")
        issue(0, k)
    for par in range(2):
        body("p", NM, par)
        a(f"s_cmp_ge_u32 s{sTau}, s{sT}")
        if par == 0: a("s_cbranch_scc1 L_epi")
        else: a(f"s_cbranch_scc0 L_p0")
    a("L_epi:")
    st(96)
    a(f"v_mov_b32 v{vX}, 0"); a(f"ds_write_b32 v{vQoff}, v{vX}")
    e = [vD[0]+i for i in range(12)]
    a(f"v_mov_b32 v{vY}, v{vLs}")
    a(f"s_mul_i32 s70, s{sW}, {WSTR}"); a(f"s_add_u32 s70, s70, {OB}")
    a(f"v_lshl_add_u32 v{e[0]}, v0, 4, s70")
    a(f"v_permlane16_swap_b32 v{vY}, v{vLs}"); a(f"v_add_f32 v{vLs}, v{vLs}, v{vY}")
    a(f"v_mov_b32 v{vY}, v{vLs}")
    a(f"s_lshl_b32 s71, s{sW}, 2"); a(f"s_add_u32 s71, s71, {MB}")
    a(f"v_bfe_u32 v{e[1]}, v0, 2, 2")
    a(f"v_permlane32_swap_b32 v{vY}, v{vLs}"); a(f"v_add_f32 v{vLs}, v{vLs}, v{vY}")
    a(f"v_lshl_add_u32 v{e[1]}, v{e[1]}, 5, s71")
    a(f"ds_write_b128 v{e[0]}, v[{vOa}:{vOa+3}]")
    a(f"ds_write_b128 v{e[0]}, v[{vOb}:{vOb+3}] offset:{ESTR}")
    a(f"ds_write2_b32 v{e[1]}, v{vMx}, v{vLs} offset0:0 offset1:32")
    a(f"s_lshl_b32 s72, s{sW}, 5"); a(f"s_add_u32 s72, s72, {MB}"); a(f"v_mov_b32 v{e[2]}, s72")
    a(f"s_lshl_b32 s72, s{sW}, 6"); a(f"s_add_u32 s72, s72, {OB}")
    a(f"v_lshl_add_u32 v{e[3]}, v{vT[0]}, 8, s72")
    a(f"v_and_b32 v{e[4]}, 1, v0"); a(f"v_lshl_add_u32 v{e[3]}, v{e[4]}, 5, v{e[3]}")
    a(f"v_bfe_u32 v{e[4]}, v0, 2, 2"); a(f"v_lshl_add_u32 v{e[3]}, v{e[4]}, 2, v{e[3]}")
    a(f"v_bfe_u32 v{e[4]}, v0, 1, 1"); a(f"v_mul_u32_u24 v{e[4]}, {ESTR}, v{e[4]}"); a(f"v_add_u32 v{e[3]}, v{e[3]}, v{e[4]}")
    for w in range(1,4): a(f"v_add_u32 v{e[3+w]}, {w*WSTR}, v{e[3]}")
    a(f"s_lshl_b32 s72, s{sW}, 8"); a(f"s_add_u32 s72, s72, {SH}")
    a(f"v_lshl_add_u32 v{e[7]}, v{vT[0]}, 6, s72")
    a(f"v_bfe_u32 v{e[8]}, v0, 1, 2"); a(f"v_lshl_add_u32 v{e[7]}, v{e[8]}, 4, v{e[7]}")
    a(f"v_bfe_u32 v{e[8]}, v0, 3, 1"); a(f"v_lshl_add_u32 v{e[7]}, v{e[8]}, 3, v{e[7]}")
    a(f"v_and_b32 v{e[8]}, 1, v0"); a(f"v_lshl_add_u32 v{e[7]}, v{e[8]}, 2, v{e[7]}")
    a(f"s_cmp_ge_u32 s{sW}, 2"); a(f"s_cselect_b32 s72, s{sOutB}, s{sOutA}")
    a(f"s_and_b32 s70, s{sW}, 1"); a("s_lshl_b32 s70, s70, 8"); a("s_add_u32 s72, s72, s70")
    a(f"v_lshlrev_b32 v{e[8]}, 2, v0")
    a("s_waitcnt vmcnt(0) lgkmcnt(0)")
    a("s_barrier")
    NPART = 4 + (0 if noshared else NSP)
    E = RING
    a(f"ds_read_b128 v[{E}:{E+3}], v{e[2]}"); a(f"ds_read_b128 v[{E+4}:{E+7}], v{e[2]} offset:16")
    a(f"ds_read_b128 v[{E+8}:{E+11}], v{e[2]} offset:128"); a(f"ds_read_b128 v[{E+12}:{E+15}], v{e[2]} offset:144")
    for w in range(4): a(f"ds_read2_b32 v[{E+16+2*w}:{E+17+2*w}], v{e[3+w]} offset0:0 offset1:4")
    for s in range(NPART-4): a(f"ds_read_b32 v{E+25+2*s}, v{e[7]} offset:{1024*s}")
    a(f"s_waitcnt lgkmcnt({NPART+2})")
    a(f"v_max3_f32 v{vX}, v{E}, v{E+1}, v{E+2}")
    i = 3
    while i < NPART:
        if i+1 < NPART: a(f"v_max3_f32 v{vX}, v{vX}, v{E+i}, v{E+i+1}"); i += 2
        else: a(f"v_max_f32 v{vX}, v{vX}, v{E+i}"); i += 1
    for w in range(NPART): a(f"v_sub_f32 v{E+w}, v{E+w}, v{vX}")
    for w in range(NPART): a(f"v_exp_f32 v{E+w}, v{E+w}")
    a(f"s_waitcnt lgkmcnt({NPART})")
    a(f"v_mul_f32 v{vX}, v{E}, v{E+8}")
    for w in range(1,NPART): a(f"v_fmac_f32 v{vX}, v{E+w}, v{E+8+w}")
    a(f"v_rcp_f32 v{vX}, v{vX}")
    a("s_waitcnt lgkmcnt(0)")
    for s in range(NPART-4): a(f"v_lshlrev_b32 v{E+24+2*s}, 16, v{E+25+2*s}"); a(f"v_and_b32 v{E+25+2*s}, 0xffff0000, v{E+25+2*s}")
    a(f"v_mul_f32 v{vY}, v{E}, v{E+16}"); a(f"v_mul_f32 v{vAl}, v{E}, v{E+17}")
    for w in range(1,NPART):
        a(f"v_fmac_f32 v{vY}, v{E+w}, v{E+16+2*w}"); a(f"v_fmac_f32 v{vAl}, v{E+w}, v{E+17+2*w}")
    a(f"v_mul_f32 v{vY}, v{vY}, v{vX}"); a(f"v_mul_f32 v{vAl}, v{vAl}, v{vX}")
    a(f"v_cvt_pk_bf16_f32 v{vY}, v{vY}, v{vAl}")
    a(f"buffer_store_dword v{vY}, v{e[8]}, s[36:39], s72 offen")
    a("s_branch L_fin")

    a("L_coll:")
    a("s_waitcnt lgkmcnt(0)")
    a(f"v_min3_u32 v{t[4]}, v{t[4]}, v{t[5]}, v{t[6]}"); a(f"v_min_u32 v{t[4]}, v{t[4]}, v{t[7]}")
    a("v_lshlrev_b32 v1, 4, v0")
    a(f"v_readfirstlane_b32 s{sS}, v{t[4]}")
    a("v_and_b32 v4, 3, v0"); a("v_lshlrev_b32 v4, 5, v4"); a("v_lshrrev_b32 v5, 2, v0"); a("v_lshl_add_u32 v4, v5, 2, v4")
    a(f"v_add_u32 v4, {MB+16}, v4")
    a(f"s_lshr_b32 s{sS}, s{sS}, {LG}"); a(f"s_lshl_b32 s98, s{sS}, 1")
    st(94)
    def controller():
        a(f"v_mov_b32 v2, {SX+16}")
        for c,(R,rules) in enumerate(ctl):
            a(f"L_k{c}:"); a(f"s_sleep {csleep}"); a("ds_read_b32 v3, v2"); a("s_waitcnt lgkmcnt(0)"); a("v_readfirstlane_b32 s71, v3")
            a(f"s_cmp_gt_u32 s71, {R}"); a(f"s_cbranch_scc1 L_k{c}")
            a(f"s_cmp_le_u32 s71, 1"); a("s_cbranch_scc1 L_kend")
            a("s_mov_b64 exec, 1"); a("v_mov_b32 v3, 1")
            a(f"buffer_atomic_add v3, off, s[84:87], 0 offset:{128+4*c} sc0")
            a("s_waitcnt vmcnt(0)"); a("v_readfirstlane_b32 s71, v3")
            code = {"L":0x200, "M":0, "H":0x100, "X":0x300}
            for i,(th,lv,tl) in enumerate(rules):
                if i == 0: a(f"s_mov_b32 s72, {code[lv]|tl}")
                else: a(f"s_cmp_ge_u32 s71, {th}"); a(f"s_cselect_b32 s72, {code[lv]|tl}, s72")
            a("v_mov_b32 v3, s72"); a("ds_write_b32 v2, v3 offset:4")
            a("s_mov_b64 exec, -1")
        a("L_kend:")
        if fb is not None:
            thH, thL, bias, tlH, tlL, fsl = fb["H"], fb["L"], fb["bias"], fb.get("tH", tail), fb.get("tL", tail), fb.get("sleep", 16)
            every = fb.get("every", 1)
            a(f"s_sub_u32 s60, s{sP}, 3"); a(f"s_cmp_eq_u32 s60, s{sH}"); a("s_cselect_b32 s60, -1, 0")
            a(f"s_cmp_lt_u32 s{sH}, 8"); a("s_cselect_b32 s60, s60, 0")
            a(f"s_lshl_b32 s61, s{sH}, 2")
            a("s_mov_b64 exec, 1")
            a("L_fb:")
            a(f"s_sleep {fsl}")
            a("buffer_load_dwordx4 v[12:15], off, s[84:87], 0 offset:128 sc1")
            a("buffer_load_dwordx4 v[16:19], off, s[84:87], 0 offset:144 sc1")
            a("ds_read_b32 v3, v2"); a("s_waitcnt lgkmcnt(0)"); a("v_readfirstlane_b32 s71, v3")
            a("s_add_u32 s62, s71, 1")
            a("s_cmp_eq_u32 s60, 0"); a("s_cbranch_scc1 L_fb1")
            a("s_cmp_ge_u32 s62, s60"); a("s_cbranch_scc1 L_fb1")
            a("s_cmp_gt_u32 s62, 0x1000"); a("s_cbranch_scc1 L_fb1")
            a(f"s_sub_u32 s60, s62, {every-1}"); a("s_max_i32 s60, s60, 1"); a("v_mov_b32 v10, s62")
            if not fb.get("now"): a("buffer_store_dword v10, off, s[84:87], s61 offset:128 sc1")
            a("L_fb1:")
            a("s_waitcnt vmcnt(0)")
            a("v_add3_u32 v20, v12, v13, v14"); a("v_min3_u32 v21, v12, v13, v14")
            a("v_add3_u32 v20, v20, v15, v16"); a("v_min3_u32 v21, v21, v15, v16")
            a("v_add3_u32 v20, v20, v17, v18"); a("v_min3_u32 v21, v21, v17, v18")
            a("v_add_u32 v20, v20, v19"); a("v_min_u32 v21, v21, v19")
            a("s_lshl_b32 s62, s62, 3"); a(f"s_add_u32 s62, s62, {bias}")
            a("v_readfirstlane_b32 s63, v20"); a("v_readfirstlane_b32 s64, v21")
            a("s_sub_u32 s62, s62, s63")
            a(f"s_cmp_ge_i32 s62, {thH}"); a(f"s_cselect_b32 s65, {0x100|tlH}, {tail}")
            a(f"s_cmp_le_i32 s62, {-thL}"); a(f"s_cselect_b32 s65, {0x200|tlL}, s65")
            if "X" in fb: a(f"s_cmp_ge_i32 s62, {fb['X']}"); a(f"s_cselect_b32 s65, {0x300}, s65")
            a("s_cmp_eq_u32 s64, 0"); a(f"s_cselect_b32 s65, {tail}, s65")
            a("s_cmp_gt_u32 s71, 0x1000"); a(f"s_cselect_b32 s65, {tail}, s65")
            a("v_mov_b32 v3, s65"); a("ds_write_b32 v2, v3 offset:4")
            a(f"s_cmp_gt_u32 s71, {wake}"); a("s_cbranch_scc1 L_fb")
            a("s_mov_b64 exec, -1")
    if noshared: controller()
    if not noshared:
        a("s_cmp_eq_u32 s98, 0"); a("s_cbranch_scc1 L_c2")
        a(f"s_cmp_eq_u32 s{sRole}, 0"); a("s_cbranch_scc1 L_c2")
        lK = [8,9,10,11]; lV = [12,13,14,15]; lL = 16
        a(f"s_mul_i32 s71, s98, s{sP}"); a("s_lshl_b32 s71, s71, 3")
        a(f"v_lshl_add_u32 v20, v0, 3, s71")
        a(f"ds_read_b64 v[{lL}:{lL+1}], v20 offset:{BT}")
        a("v_and_b32 v21, 15, v0"); a("v_lshrrev_b32 v22, 4, v0")
        for q in range(4):
            a(f"v_add_u32 v23, {4*q}, v22")
            a(f"v_lshlrev_b32 v25, 12, v23")
            if q: a(f"v_subrev_u32 v25, {1024*q}, v25")
            a(f"v_xor_b32 v24, v23, v21"); a(f"v_lshl_add_u32 v{lK[q]}, v24, 4, v25")
            a(f"v_and_b32 v24, 7, v23"); a("v_lshlrev_b32 v24, 1, v24"); a("v_xor_b32 v24, v24, v21"); a(f"v_lshl_add_u32 v{lV[q]}, v24, 4, v25")
        a(f"s_lshl_b32 s70, s{sH}, 8")
        a("s_waitcnt lgkmcnt(0)")
        a(f"v_lshl_add_u32 v{lL}, v{lL}, 16, s70"); a(f"v_lshl_add_u32 v{lL+1}, v{lL+1}, 16, s70")
        a("s_mov_b32 s72, 0")
        a("s_mov_b32 s99, 0")
        def lstage():
            a(f"v_readlane_b32 s50, v{lL}, s72"); a(f"v_readlane_b32 s51, v{lL+1}, s72")
            a("s_and_b32 s75, s72, 3"); a("s_lshl_b32 s75, s75, 14"); a("s_add_u32 s72, s72, 1")
            for b in range(2):
                for (srd_, vo, off) in (("s[16:19]", lK, 0), ("s[20:23]", lV, 8192)):
                    a(f"s_add_u32 m0, s75, {off+4096*b}"); a("s_nop 0")
                    for q in range(4): a(f"buffer_load_dwordx4 v{vo[q]}, {srd_}, s{50+b} offen offset:{1024*q}{fs} lds")
        a("L_lp:")
        lstage()
        a(f"s_min_u32 s71, s98, {DS}"); a("s_cmp_lt_u32 s72, s71"); a("s_cbranch_scc1 L_lp")
        a("L_ll:")
        a("s_sub_u32 s71, s72, s99")
        for dd in range(DS, 1, -1):
            a(f"s_cmp_eq_u32 s71, {dd}"); a(f"s_cbranch_scc1 L_lw{dd}")
        a("s_waitcnt vmcnt(0)")
        for dd in range(2, DS+1):
            a(f"L_lw{dd}:"); a(f"s_waitcnt vmcnt({16*(dd-1)})")
        a("s_barrier")
        a("s_add_u32 s99, s99, 1")
        a("s_cmp_ge_u32 s72, s98"); a("s_cbranch_scc1 L_ln")
        lstage()
        a("L_ln:")
        a("s_cmp_lt_u32 s99, s98"); a("s_cbranch_scc1 L_ll")
        a(f"s_mul_i32 s70, s{sH}, {NSP}"); a(f"s_add_u32 s70, s70, s{sP}")
        a(f"s_lshl_b32 s71, s70, 14")
        a(f"v_mul_u32_u24 v23, {RSTR-256}, v22"); a("v_add_u32 v23, v23, v1")
        a("v_lshlrev_b32 v24, 3, v0")
        a(f"v_add_u32 v25, {MLST}, v24")
        a("s_barrier"); a("s_barrier")
        if nostore: a("s_branch L_c2")
        a(f"ds_read_b64 v[26:27], v25")
        for w in range(2):
            for dt in range(8): a(f"ds_read_b128 v[{64+32*w+4*dt}:{67+32*w+4*dt}], v23 offset:{STG+4*RSTR*(8*w+dt)}")
            for dt in range(8):
                a(f"s_waitcnt lgkmcnt({7-dt})")
                a(f"buffer_store_dwordx4 v[{64+32*w+4*dt}:{67+32*w+4*dt}], v1, s[88:91], s71 offen offset:{1024*(dt&3)}{sfl}")
                if dt&3 == 3: a("s_add_u32 s71, s71, 4096")
                if sgap: a(f"s_waitcnt vmcnt({sgap-1})")
        a(f"s_lshl_b32 s72, s70, 9"); a(f"s_add_u32 s72, s72, {WSML}")
        a(f"buffer_store_dwordx2 v[26:27], v24, s[88:91], s72 offen{sfl}")
        a("s_lshl_b32 s70, s70, 2"); a("v_mov_b32 v2, 1")
        a("s_waitcnt vmcnt(0)")
        if wbl: a("buffer_wbl2 sc1"); a("s_waitcnt vmcnt(0)")
        a("s_mov_b64 exec, 1")
        a("buffer_store_dword v2, off, s[84:87], s70 sc1")
        a("s_mov_b64 exec, -1")
        if stamp: a("s_memrealtime s[100:101]")
        a("L_c2:")
        controller()
        if not nocoll: a("s_cmp_lg_u32 s98, 0"); a("s_cbranch_scc1 L_c1")
        for i in range(4*NSP): a(f"v_mov_b32 v{64+i}, 0")
        a("v_mov_b32 v8, 0xf149f2ca"); a("v_mov_b32 v9, 0")
        a(f"v_cmp_gt_u32 vcc, {4*NSP}, v0"); a("s_and_saveexec_b64 s[60:61], vcc")
        a("s_branch L_c3")
        a("L_c1:")
        a("L_c4:")
        if tpoll is not None: a(f"s_sleep {tsleep}"); a(f"buffer_load_dword v10, off, s[84:87], 0 offset:192{tpoll}"); a("s_waitcnt vmcnt(0)")
        else: a("s_sleep 8")
        a("ds_read_b32 v3, v2"); a("s_waitcnt lgkmcnt(0)"); a("v_readfirstlane_b32 s71, v3")
        a(f"s_cmp_gt_u32 s71, {wake}"); a("s_cbranch_scc1 L_c4")
        a(f"s_mul_i32 s70, s{sH}, {4*NSP}")
        if nopoll: a("s_branch L_ready")
        a("L_poll:")
        ld = {1:"dword v64", 2:"dwordx2 v[64:65]", 4:"dwordx4 v[64:67]"}[NSP]
        a(f"buffer_load_{ld}, off, s[84:87], s70 sc1")
        a("s_waitcnt vmcnt(0)")
        for s in range(1,NSP): a(f"v_and_b32 v64, v64, v{64+s}")
        a("s_nop 0"); a("v_readfirstlane_b32 s71, v64")
        a("s_cmp_lg_u32 s71, 0"); a("s_cbranch_scc1 L_ready")
        a(f"s_sleep {sleep}"); a("s_branch L_poll")
        a("L_ready:")
        if inv: a("buffer_inv sc1"); a("s_waitcnt vmcnt(0)")
        a(f"s_mul_i32 s70, s{sH}, {NSP*16384}")
        a(f"v_mov_b32 v2, s{sB}"); a(f"v_mov_b32 v3, s{sA}"); a("v_cmp_gt_u32 vcc, 32, v0")
        a("v_and_b32 v6, 31, v0"); a("v_lshlrev_b32 v6, 4, v6")
        a("v_cndmask_b32 v7, v2, v3, vcc"); a("v_lshl_add_u32 v7, v7, 9, v6")
        for s in range(NSP):
            if not noO: a(f"buffer_load_dwordx4 v[{64+4*s}:{67+4*s}], v7, s[88:91], s70 offen{cfl}")
            if s+1 < NSP: a("s_add_u32 s70, s70, 16384")
        a("v_and_b32 v6, 2, v0"); a("v_cmp_eq_u32 vcc, 0, v6")
        a("v_and_b32 v6, 1, v0"); a("s_nop 0")
        a("v_cndmask_b32 v2, v2, v3, vcc")
        a("v_lshl_add_u32 v2, v2, 1, v6"); a("v_lshl_add_u32 v2, v5, 6, v2"); a("v_lshlrev_b32 v2, 3, v2")
        a(f"s_mul_i32 s70, s{sH}, {NSP*512}"); a(f"s_add_u32 s70, s70, {WSML}")
        a(f"v_cmp_gt_u32 vcc, {4*NSP}, v0"); a("s_and_saveexec_b64 s[60:61], vcc")
        if not noml: a(f"buffer_load_dwordx2 v[8:9], v2, s[88:91], s70 offen{cfl}")
        a("s_waitcnt vmcnt(0)")
        a("L_c3:")
        a("ds_write2_b32 v4, v8, v9 offset0:0 offset1:32")
        a("s_mov_b64 exec, s[60:61]")
        for s in range(NSP): a(f"ds_write_b128 v1, v[{64+4*s}:{67+4*s}] offset:{SH+1024*s}")
    st(96)
    a("s_waitcnt lgkmcnt(0)")
    a("s_barrier")
    a("s_branch L_fin")

    a("L_shwg:")
    wKa = [26,27,28,29]; wVa = [30+i for i in range(8)]
    wMx,wLs,wAl,wX,wY = 40,41,42,43,39
    wQ = 44; wP = 60; wO = 96; wF = 128; wD = 160; u = [128+i for i in range(10)]
    sTs = 98; sTa = 99
    a(f"v_and_b32 v{u[0]}, 15, v0")
    g_ = vT[0]
    a(f"s_lshl_b32 s70, s{sW}, 3")
    a(f"v_lshrrev_b32 v{u[2]}, 1, v{u[0]}"); a(f"v_add_u32 v{u[2]}, s70, v{u[2]}")
    a(f"v_lshlrev_b32 v{u[3]}, 2, v{u[2]}")
    a(f"ds_bpermute_b32 v{u[3]}, v{u[3]}, v{vCtx}")
    a(f"v_and_b32 v{u[4]}, 1, v0"); a(f"v_lshlrev_b32 v{u[4]}, 8, v{u[4]}")
    a(f"v_lshl_add_u32 v{u[4]}, v{g_}, 4, v{u[4]}"); a(f"v_lshl_add_u32 v{u[4]}, v{u[2]}, 13, v{u[4]}")
    a(f"v_mov_b32 v{u[5]}, {OOB}")
    a(f"s_lshl_b32 s71, s{sH}, 9")
    a("s_waitcnt lgkmcnt(0)")
    a(f"v_cmp_gt_i32 vcc, 1, v{u[3]}")
    a(f"v_xor_b32 v{u[6]}, v{g_}, v{u[0]}"); a(f"v_lshlrev_b32 v{u[6]}, 4, v{u[6]}")
    a(f"v_cndmask_b32 v{u[4]}, v{u[4]}, v{u[5]}, vcc")
    for k in range(4): a(f"buffer_load_dwordx4 v[{wQ+4*k}:{wQ+4*k+3}], v{u[4]}, s[24:27], s71 offen offset:{64*k}")
    a(f"v_lshl_add_u32 v{wKa[0]}, v{u[0]}, 8, v{u[6]}")
    for k in range(1,4): a(f"v_xor_b32 v{wKa[k]}, {64*k}, v{wKa[0]}")
    a(f"v_bfe_u32 v{u[6]}, v0, 2, 2"); a(f"v_lshl_add_u32 v{u[6]}, v{g_}, 2, v{u[6]}")
    a(f"v_and_b32 v{u[7]}, 7, v{u[6]}"); a(f"v_lshlrev_b32 v{u[7]}, 5, v{u[7]}")
    a(f"v_lshl_add_u32 v{u[7]}, v{u[6]}, 8, v{u[7]}")
    a(f"v_and_b32 v{u[6]}, 3, v0"); a(f"v_lshl_add_u32 v{wVa[0]}, v{u[6]}, 3, v{u[7]}")
    for k in range(1,8): a(f"v_xor_b32 v{wVa[k]}, {32*k}, v{wVa[0]}")
    for i in range(32): a(f"v_mov_b32 v{wO+i}, 0")
    a(f"v_mov_b32 v{wMx}, 0xf149f2ca"); a(f"v_mov_b32 v{wLs}, 0")
    a(f"s_mov_b32 s92, 0x{SC:08x}")
    a(f"s_mov_b32 s{sTa}, 0")
    a(f"s_sub_u32 s93, s{sTs}, {pre}"); a("s_cselect_b32 s93, 0, s93")
    a("s_waitcnt vmcnt(0)")
    fq = lambda k,b: wF+8*k+4*b
    for sl in range(4):
        base = sl*16384
        a(f"L_sh{sl}:")
        a(f"s_cmp_eq_u32 s{sTa}, s93")
        a("s_barrier")
        for k in range(4):
            for b in range(2):
                a(f"ds_read_b128 v[{fq(k,b)}:{fq(k,b)+3}], v{wKa[k]} offset:{base+4096*b}")
        a(f"s_cbranch_scc1 L_shx{sl}")
        a(f"L_shy{sl}:")
        a(f"s_add_u32 s{sTa}, s{sTa}, 1")
        for k in range(4):
            a(f"s_waitcnt lgkmcnt({6-2*k+4*k})")
            for b in range(2):
                c = "0" if k == 0 else f"v[{wD+4*b}:{wD+4*b+3}]"
                a(f"v_mfma_f32_16x16x32_bf16 v[{wD+4*b}:{wD+4*b+3}], v[{fq(k,b)}:{fq(k,b)+3}], v[{wQ+4*k}:{wQ+4*k+3}], {c}")
            for b in range(2):
                dt = 2*k+b
                for bb in range(2):
                    r = fq(k,b)+2*bb
                    a(f"ds_read_b64_tr_b16 v[{r}:{r+1}], v{wVa[dt]} offset:{base+8192+4096*bb}")
        a("s_nop 2")
        a(f"v_max3_f32 v{wX}, v{wD}, v{wD+1}, v{wD+2}")
        a(f"v_max3_f32 v{wX}, v{wX}, v{wD+3}, v{wD+4}")
        a(f"v_max3_f32 v{wY}, v{wD+5}, v{wD+6}, v{wD+7}"); a(f"v_max_f32 v{wX}, v{wX}, v{wY}")
        a(f"v_mov_b32 v{wY}, v{wX}"); a("s_nop 1")
        a(f"v_permlane16_swap_b32 v{wY}, v{wX}"); a(f"v_max_f32 v{wX}, v{wX}, v{wY}")
        a(f"v_mov_b32 v{wY}, v{wX}"); a("s_nop 1")
        a(f"v_permlane32_swap_b32 v{wY}, v{wX}"); a(f"v_max_f32 v{wX}, v{wX}, v{wY}")
        a(f"v_mul_f32 v{wX}, s92, v{wX}"); a(f"v_max_f32 v{wX}, v{wX}, v{wMx}")
        a(f"v_sub_f32 v{wAl}, v{wMx}, v{wX}")
        for i in range(8): a(f"v_fma_f32 v{wD+i}, v{wD+i}, s92, -v{wX}")
        a(f"v_exp_f32 v{wAl}, v{wAl}")
        for i in range(8): a(f"v_exp_f32 v{wD+i}, v{wD+i}")
        a(f"v_mov_b32 v{wMx}, v{wX}")
        for i in range(4): a(f"v_cvt_pk_bf16_f32 v{wP+i}, v{wD+2*i}, v{wD+2*i+1}")
        def omul(dt):
            for i in range(4): a(f"v_mul_f32 v{wO+4*dt+i}, v{wAl}, v{wO+4*dt+i}")
        omul(0); omul(1)
        a(f"v_fma_f32 v{wLs}, v{wLs}, v{wAl}, v{wD}")
        a("s_waitcnt lgkmcnt(0)")
        for dt in range(8):
            r = fq(dt>>1, dt&1)
            a(f"v_mfma_f32_16x16x32_bf16 v[{wO+4*dt}:{wO+4*dt+3}], v[{r}:{r+3}], v[{wP}:{wP+3}], v[{wO+4*dt}:{wO+4*dt+3}]")
            if dt+2 < 8: omul(dt+2)
            if dt < 7: a(f"v_add_f32 v{wLs}, v{wLs}, v{wD+dt+1}")
        a(f"s_cmp_ge_u32 s{sTa}, s{sTs}")
        if sl < 3: a("s_cbranch_scc1 L_shout")
        else: a("s_cbranch_scc0 L_sh0")
    a("L_shout:")
    a("s_barrier")
    a(f"v_mov_b32 v{wY}, v{wLs}")
    a(f"s_mul_i32 s72, s{sW}, {16*RSTR}"); a(f"s_add_u32 s72, s72, {STG}")
    a(f"v_and_b32 v{wD+2}, 15, v0"); a(f"v_lshl_add_u32 v{wD+1}, v{g_}, 4, s72"); a(f"v_mul_u32_u24 v{wD+2}, {RSTR}, v{wD+2}"); a(f"v_add_u32 v{wD+1}, v{wD+1}, v{wD+2}")
    a(f"v_permlane16_swap_b32 v{wY}, v{wLs}"); a(f"v_add_f32 v{wLs}, v{wLs}, v{wY}")
    a(f"v_mov_b32 v{wY}, v{wLs}")
    a(f"v_and_b32 v{wD}, 15, v0")
    a(f"s_lshl_b32 s72, s{sW}, 7"); a(f"s_add_u32 s72, s72, {MLST}")
    a(f"v_permlane32_swap_b32 v{wY}, v{wLs}"); a(f"v_add_f32 v{wLs}, v{wLs}, v{wY}")
    a(f"v_lshl_add_u32 v{wD}, v{wD}, 3, s72")
    for k in range(4):
        for i in range(4): a(f"v_cvt_pk_bf16_f32 v{wF+4*k+i}, v{wO+8*k+2*i}, v{wO+8*k+2*i+1}")
        a(f"ds_write_b128 v{wD+1}, v[{wF+4*k}:{wF+4*k+3}] offset:{64*k}")
    a(f"ds_write_b64 v{wD}, v[{wMx}:{wMx+1}]")
    for i in range(8): a(f"v_mov_b32 v{vOa+i}, 0")
    a(f"v_mov_b32 v{vMx}, 0xf149f2ca"); a(f"v_mov_b32 v{vLs}, 0")
    for j in range(3): a(f"v_mov_b32 v{vP+4*j}, 0"); a(f"v_mov_b32 v{vP+4*j+1}, 0")
    a("s_waitcnt lgkmcnt(0)")
    a("s_barrier")
    if stamp: a("s_memrealtime s[100:101]")
    a("s_branch L_main")
    for sl in range(4):
        a(f"L_shx{sl}:")
        for k in range(NP): issue(0, k)
        a(f"s_branch L_shy{sl}")
    a("L_fin:")
    if ptrace: vEff = 167
    if trace or ptrace:
        a("s_mov_b64 exec, -1")
        a(f"s_mul_i32 s70, s2, 5"); a(f"s_add_u32 s70, s70, s{sW}"); a("s_lshl_b32 s70, s70, 8"); a(f"s_add_u32 s70, s70, {1<<23}")
        a("v_lshl_add_u32 v14, v0, 2, s70")
        a(f"global_store_dword v14, v{vEff}, s[78:79]")
    if stamp:
        a("s_mov_b64 exec, 1")
        a("s_memrealtime s[98:99]"); a("s_waitcnt lgkmcnt(0)")
        a(f"s_mul_i32 s70, s2, 5"); a(f"s_add_u32 s70, s70, s{sW}"); a("s_lshl_b32 s70, s70, 5"); a(f"s_add_u32 s70, s70, {1<<22}")
        a("s_getreg_b32 s83, hwreg(HW_REG_XCC_ID)")
        a(f"s_cmp_ge_u32 s{sW}, 4"); a(f"s_cselect_b32 s71, 1, 0"); a(f"s_lshl_b32 s72, s{sRole}, 1"); a("s_add_u32 s71, s71, s72"); a("s_add_u32 s71, s71, 0x7700")
        a("v_mov_b32 v18, s100"); a("v_mov_b32 v19, s2")
        a("v_mov_b32 v10, s82"); a("v_mov_b32 v11, s94"); a("v_mov_b32 v12, s96"); a("v_mov_b32 v13, s98")
        a("v_mov_b32 v14, s70"); a("v_mov_b32 v16, s83"); a(f"v_mov_b32 v17, s71")
        a("global_store_dwordx4 v14, v[10:13], s[78:79]")
        a("global_store_dwordx4 v14, v[16:19], s[78:79] offset:16")
    if calib:
        a("L_cal:"); a("s_memrealtime s[98:99]"); a("s_waitcnt lgkmcnt(0)"); a("s_sub_u32 s98, s98, s82")
        a(f"s_cmp_lt_u32 s98, {calib}"); a("s_cbranch_scc1 L_cal")
    a("L_end:"); a("s_endpgm")
    hdr = open("ref_stub.s").read()
    top = hdr[:hdr.index("; @launch")]
    out = top + f"; @launch grid=({NWG},1,1) block=(320,1,1) lds={LDSZ}\n"
    out += f""".amdgcn_target "amdgcn-amd-amdhsa--gfx950"
.text
.globl {KNAME}
.p2align 8
.type {KNAME},@function
{KNAME}:
""" + "\n".join(("" if x.endswith(":") else "    ")+x for x in L) + f"""
.section .rodata,"a"
.p2align 6
.amdhsa_kernel {KNAME}
  .amdhsa_next_free_vgpr 168
  .amdhsa_next_free_sgpr 102
  .amdhsa_accum_offset 168
  .amdhsa_group_segment_fixed_size 0
  .amdhsa_kernarg_size 64
  .amdhsa_user_sgpr_count 2
  .amdhsa_user_sgpr_kernarg_segment_ptr 1
  .amdhsa_system_sgpr_workgroup_id_x 1
.end_amdhsa_kernel
"""
    return out
if __name__ == "__main__":
    kw = eval("dict(%s)" % (sys.argv[2] if len(sys.argv) > 2 else ""))
    open(sys.argv[1], "w").write(gen(**kw))
```

```python
import sys, math, struct
KNAME = "standalone__paged_block_table_kv_radixattention__sampling_kernel"
KVBYTES = 138412032
OOB = 0x40000000
def f2u(x): return struct.unpack('<I', struct.pack('<f', x))[0]
SC = f2u(math.log2(math.e)/math.sqrt(128.0))

def gen(NP=5, NM=14, tail=5, head=0, NLO=4, NHI=6, ctl=(), csleep=8, xmask=0, dt=None, order=1, cpf=1, xh=None, perm=0, hsw=None, fb=None, tpoll=None, tsleep=32, prot=0, hcls=None, hlev='H', htail=None, tailh=0, wbl=0, inv=0, cfl=' sc1', noml=0, noO=0, dlev='M', dtail=None, nst=4, samedst=0, sfl=' sc1', sgap=0, nopoll=0, nocoll=0, nostore=0, hrot=2, NSP=2, fp=" nt", fs=" nt", hmap=0, stamp=False, noshared=False, calib=0, sleep=32, prio=1, wake=2, onlyduty=False, DS=3, pre=2, trace=False, ptrace=False):
    L = []; a = L.append
    usemode = bool(ctl) or fb is not None or dlev != 'M' or dtail is not None or hcls is not None
    NWG = 256
    sW, sH, sP, sA, sB, sCA, sCB, sS, sT, sTau = 40,41,42,43,44,45,46,47,48,49
    RT = 2 if NM <= 15 else 3; sSet = [50, 54, 4]; sPack = 58; sRole = 59; sMask = [60,62,64,66]; sTmp = 68
    sOutA, sOutB = 73, 74
    vKoff, vVoff, vM0, vM1, vShift, vScale, vNinf = 1,2,3,4,5,6,7
    vT = [8,9,10,11]; vList = [12,13,14,15]; vPackL = 16; vMode = 17
    vQ = 18; vOa = 22; vOb = 26; vMx, vLs, vAl, vX, vY = 30,31,32,33,34
    vS = [35,36,37,38]; vQoff = 39
    vD = [40,44,48]; vP = 52; vCtx = 62; vEff = 63
    RING = 64
    t = [64+i for i in range(40)]
    BT = 49152; SX = 65536; MLST = SX+64; LDSZ = MLST+512
    OB = 0; ESTR = 1088; WSTR = 2*ESTR; SH = OB+4*WSTR; MB = SH+NSP*1024; STG = 16384; RSTR = 272
    WSO = 0; WSML = 16*NSP*16*1024; WSZ = WSML + 16*NSP*64*8
    LG = NSP.bit_length()-1
    def srd(d, p, n):
        a(f"s_mov_b32 s{d}, s{p}"); a(f"s_mov_b32 s{d+1}, s{p+1}")
        a(f"s_mov_b32 s{d+2}, {n}"); a(f"s_mov_b32 s{d+3}, 0x20000")
    def st(n):
        if stamp: a(f"s_memrealtime s[{n}:{n+1}]")

    a(f"s_cmp_ge_u32 s2, {NWG}"); a("s_cbranch_scc1 L_end")
    if xmask: a("s_and_b32 s3, s2, 7"); a(f"s_lshr_b32 s3, {xmask}, s3"); a("s_bitcmp0_b32 s3, 0"); a("s_cbranch_scc1 L_end")
    a("s_load_dwordx8 s[4:11], s[0:1], 0")
    a("s_load_dwordx4 s[12:15], s[0:1], 32")
    a("s_load_dwordx4 s[76:79], s[0:1], 48")
    if stamp or calib: a("s_memrealtime s[82:83]")
    a("v_lshrrev_b32 v1, 6, v0")
    a("v_and_b32 v0, 63, v0")
    if hmap == 0:
        if hrot: a(f"s_add_u32 s3, s2, {hrot}"); a(f"s_and_b32 s{sH}, s3, 15")
        else: a(f"s_and_b32 s{sH}, s2, 15")
        a(f"s_lshr_b32 s{sP}, s2, 4")
    elif hmap == 2:
        a(f"s_lshr_b32 s{sH}, s2, 4"); a(f"s_and_b32 s{sP}, s2, 15")
    elif hmap == 3:
        a(f"s_lshr_b32 s{sH}, s2, 4"); a(f"s_and_b32 s{sP}, s2, 7"); a(f"s_and_b32 s3, s{sH}, 7")
        a(f"s_cmp_eq_u32 s{sP}, s3"); a(f"s_cselect_b32 s96, 0, s{sP}"); a(f"s_cmp_eq_u32 s{sP}, 0"); a(f"s_cselect_b32 s{sP}, s3, s96")
        a(f"s_lshl_b32 s{sP}, s{sP}, 1"); a("s_bfe_u32 s3, s2, 0x10003"); a(f"s_or_b32 s{sP}, s{sP}, s3")
    elif hmap == 1:
        a(f"s_lshr_b32 s{sH}, s2, 4"); a(f"s_add_u32 s{sP}, s2, s{sH}"); a(f"s_and_b32 s{sP}, s{sP}, 15")
    if prot:
        a(f"s_add_u32 s{sP}, s{sP}, {prot}"); a(f"s_and_b32 s{sP}, s{sP}, 15")
    a(f"v_readfirstlane_b32 s{sW}, v1")
    if cpf:
        if cpf == 1: a(f"s_cmp_lt_u32 s{sW}, 4"); a("s_cbranch_scc1 L_npf")
        a("s_getpc_b64 s[90:91]")
        a("L_pc:")
        a("v_lshlrev_b32 v160, 7, v0")
        for i in range(2):
            if i: a("v_add_u32 v160, 8192, v160")
            a("v_min_u32 v161, L_end-L_pc, v160"); a("v_mov_b32 v163, s91")
            a("v_add_co_u32 v162, vcc, s90, v161"); a("s_nop 1"); a("v_addc_co_u32 v163, vcc, 0, v163, vcc")
            a(f"global_load_dword v{164+i}, v[162:163], off")
        a("L_npf:")
    a(f"s_add_u32 s96, s{sP}, {NSP}"); a(f"s_sub_u32 s97, {31+NSP}, s{sP}"); a(f"s_sub_u32 s3, {2*NSP-1}, s{sP}")
    a(f"s_cmp_lt_u32 s{sP}, {NSP}")
    a(f"s_cselect_b32 s{sRole}, 1, 0")
    a(f"s_cselect_b32 s96, s{sP}, s96"); a(f"s_cselect_b32 s97, s3, s97")
    a(f"v_and_b32 v{t[0]}, 31, v0")
    a(f"v_lshrrev_b32 v{t[1]}, 5, v0"); a(f"v_and_b32 v{t[2]}, 15, v0")
    a(f"v_lshl_add_u32 v{t[1]}, v{t[1]}, 4, v{t[2]}")
    a(f"v_lshlrev_b32 v{t[2]}, 2, v{t[0]}"); a(f"v_lshlrev_b32 v{t[3]}, 2, v{t[1]}")
    a(f"v_lshlrev_b32 v{t[4]}, 4, v{t[0]}")
    a(f"s_lshl_b32 s{sTmp}, s{sW}, 12")
    a(f"v_lshl_add_u32 v{t[5]}, v0, 4, s{sTmp}")
    a("s_waitcnt lgkmcnt(0)")
    if ptrace: a("s_memrealtime s[100:101]"); a("s_waitcnt lgkmcnt(0)"); a("v_writelane_b32 v167, s100, 0")
    srd(32, 12, 128); srd(28, 10, 16384)
    a(f"buffer_load_dword v{vCtx}, v{t[2]}, s[32:35], 0 offen")
    a(f"buffer_load_dword v{t[6]}, v{t[3]}, s[32:35], 0 offen")
    R0 = t[8]; X = [t[12], t[16], t[20], t[24]]
    a(f"buffer_load_dwordx4 v[{R0}:{R0+3}], v{t[4]}, s[28:31], 0 offen")
    for i in range(4): a(f"buffer_load_dwordx4 v[{X[i]}:{X[i]+3}], v{t[5]}, s[28:31], 0 offen offset:{1024*i}")
    srd(16, 6, KVBYTES); srd(20, 8, KVBYTES); srd(24, 4, 262144); srd(36, 14, 262144)
    srd(84, 76, 256); srd(88, 78, WSZ)
    a(f"v_lshrrev_b32 v{vT[0]}, 4, v0")
    u0,u1 = t[28], t[29]
    a(f"v_and_b32 v{u0}, 15, v0"); a(f"v_lshlrev_b32 v{u0}, 4, v{u0}")
    a(f"v_lshl_add_u32 v{vVoff}, v{vT[0]}, 12, v{u0}")
    a(f"v_and_b32 v{u0}, 3, v0"); a(f"v_lshlrev_b32 v{u0}, 4, v{u0}")
    a(f"v_lshl_add_u32 v{u0}, v{vT[0]}, 6, v{u0}")
    a(f"v_bfe_u32 v{u1}, v0, 2, 2"); a(f"v_lshl_add_u32 v{vKoff}, v{u1}, 12, v{u0}")
    a(f"v_bfe_u32 v{u1}, v0, 2, 1"); a(f"v_lshl_add_u32 v{vQoff}, v{u1}, 8, v{u0}")
    a(f"v_and_b32 v{u1}, 1, v0"); a(f"v_lshlrev_b32 v{u1}, 4, v{u1}")
    a(f"v_mov_b32 v{vM0}, 0xffff"); a(f"v_lshlrev_b32 v{vM0}, v{u1}, v{vM0}")
    a(f"v_bfe_i32 v{u1}, v0, 1, 1")
    a(f"v_and_b32 v{vM1}, v{vM0}, v{u1}"); a(f"v_xor_b32 v{vM0}, v{vM0}, v{vM1}")
    a(f"v_and_b32 v{vShift}, 8, v0"); a(f"v_lshrrev_b32 v{vShift}, 1, v{vShift}")
    vSh = [vShift, vT[1], vT[2], vT[3]]
    for j in range(1,4): a(f"v_add_u32 v{vSh[j]}, {8*j}, v{vShift}")
    a(f"v_mov_b32 v{vScale}, 0x{SC:08x}"); a(f"v_mov_b32 v{vNinf}, 0xff800000")
    for i in range(8): a(f"v_mov_b32 v{vOa+i}, 0")
    a(f"v_mov_b32 v{vMx}, 0xf149f2ca"); a(f"v_mov_b32 v{vLs}, 0")
    for j in range(3): a(f"v_mov_b32 v{vP+4*j}, 0"); a(f"v_mov_b32 v{vP+4*j+1}, 0")
    ee = [136+j for j in range(4)]; yy = [140+j for j in range(4)]; ad = [144+j for j in range(4)]; qo = [148+j for j in range(4)]
    rm = [128+j for j in range(4)]; mu = [132+j for j in range(4)]; vSx, vSxw = 157, 158
    a(f"v_lshlrev_b32 v{ee[0]}, 2, v0")
    for j in range(1,4): a(f"v_add_u32 v{ee[j]}, {j}, v{ee[0]}")
    a(f"v_mov_b32 v{vSx}, {SX}")
    a(f"s_lshl_b32 s72, s{sW}, 2"); a(f"s_add_u32 s72, s72, {SX}"); a(f"v_mov_b32 v{vSxw}, s72")
    a(f"v_cmp_eq_u32 s[66:67], 0, v{vShift}")
    code = {"L":0x200, "M":0, "H":0x100, "X":0x300}
    a(f"s_cmp_eq_u32 s{sRole}, 0"); a(f"s_cselect_b32 s75, {tail}, {code[dlev]|(tail if dtail is None else dtail)}")
    a(f"v_mov_b32 v155, {SX+16}"); a(f"v_mov_b32 v{vMode}, s75")
    a(f"ds_write2_b32 v155, v155, v{vMode} offset0:0 offset1:1")
    if ptrace: a("s_memrealtime s[100:101]"); a("s_waitcnt lgkmcnt(0)"); a("v_writelane_b32 v167, s100, 1")
    ko, ks_, d, acc = t[30], t[31], t[32], t[33]
    a("s_waitcnt vmcnt(5)")
    if ptrace: a("s_memrealtime s[100:101]"); a("s_waitcnt lgkmcnt(0)"); a("v_writelane_b32 v167, s100, 2")
    a(f"v_add_u32 v{vEff}, -1, v{vCtx}"); a(f"v_add_u32 v{t[6]}, -1, v{t[6]}")
    a(f"v_min_u32 v{vEff}, 0x7ff, v{vEff}"); a(f"v_min_u32 v{t[6]}, 0x7ff, v{t[6]}")
    a(f"v_lshl_add_u32 v{ko}, v{t[6]}, 5, v{t[1]}"); a(f"v_lshl_add_u32 v{ks_}, v{vEff}, 5, v{t[0]}")
    a(f"v_add_u32 v{vEff}, 1, v{vEff}")
    a(f"v_sub_u32 v{d}, v{ko}, v{ks_}"); a(f"v_lshrrev_b32 v{acc}, 31, v{d}")
    for k in range(1,16):
        a(f"v_sub_u32_dpp v{d}, v{ko}, v{ks_} row_ror:{k} row_mask:0xf bank_mask:0xf")
        a(f"v_alignbit_b32 v{acc}, v{acc}, v{d}, 31")
    a(f"v_bcnt_u32_b32 v{acc}, v{acc}, 0"); a(f"v_mov_b32 v{d}, v{acc}")
    a("s_nop 1")
    a(f"v_permlane32_swap_b32 v{d}, v{acc}"); a(f"v_add_u32 v{acc}, v{d}, v{acc}")
    a(f"v_cmp_eq_u32 s[60:61], s96, v{acc}"); a(f"v_cmp_eq_u32 s[62:63], s97, v{acc}")
    a(f"v_cmp_eq_u32 s[64:65], 0, v{acc}")
    a(f"s_ff1_i32_b32 s{sA}, s60"); a(f"s_ff1_i32_b32 s{sB}, s62"); a("s_ff1_i32_b32 s69, s64")
    if order == 1: a(f"s_min_u32 s3, s{sA}, s{sB}"); a(f"s_max_u32 s{sB}, s{sA}, s{sB}"); a(f"s_mov_b32 s{sA}, s3")
    if order == 2: a(f"s_max_u32 s3, s{sA}, s{sB}"); a(f"s_min_u32 s{sB}, s{sA}, s{sB}"); a(f"s_mov_b32 s{sA}, s3")
    if order == 3: a(f"s_mov_b32 s3, s{sB}"); a(f"s_mov_b32 s{sB}, s{sA}"); a(f"s_mov_b32 s{sA}, s3")
    a(f"v_readlane_b32 s{sCA}, v{vEff}, s{sA}"); a(f"v_readlane_b32 s{sCB}, v{vEff}, s{sB}")
    a(f"v_readlane_b32 s{sS}, v{vEff}, s69")
    a(f"v_readlane_b32 s70, v{vCtx}, s{sA}"); a(f"v_readlane_b32 s71, v{vCtx}, s{sB}")
    a(f"s_cmp_ge_u32 s{sW}, 4"); a("s_cbranch_scc1 L_coll")
    a(f"s_lshl_b32 s99, s{sA}, 9"); a(f"s_lshl_b32 s92, s{sW}, 2")
    a(f"v_lshl_add_u32 v{t[0]}, v0, 4, s99")
    a(f"s_sub_u32 s94, s{sCA}, s92"); a(f"s_sub_u32 s93, 12, s92")
    a(f"s_add_u32 s96, s94, 15"); a(f"s_lshr_b32 s96, s96, 4")
    a(f"s_lshl_b32 s92, s92, 12"); a(f"s_lshl_b32 s72, s{sH}, 8"); a("s_add_u32 s92, s92, s72")
    a(f"s_lshr_b32 s{sS}, s{sS}, 6")
    if ptrace: a("s_memrealtime s[100:101]"); a("s_waitcnt lgkmcnt(0)"); a("v_writelane_b32 v167, s100, 3")
    a("s_waitcnt vmcnt(0)")
    if ptrace: a("s_memrealtime s[100:101]"); a("s_waitcnt lgkmcnt(0)"); a("v_writelane_b32 v167, s100, 4")
    for i in range(4): a(f"ds_write_b128 v{t[5]}, v[{X[i]}:{X[i]+3}] offset:{BT+1024*i}")
    a(f"v_xor_b32 v{acc}, v{X[0]}, v{R0}"); a(f"v_xor_b32 v{d}, v{X[2]}, v{R0}")
    for i in range(2):
        for c in range(4):
            if i == 0 and c == 0: continue
            a(f"v_bitop3_b32 v{acc}, v{acc}, v{X[i]+c}, v{R0+c} bitop3:0xf6")
            a(f"v_bitop3_b32 v{d}, v{d}, v{X[2+i]+c}, v{R0+c} bitop3:0xf6")
    a(f"v_or_b32 v{acc}, v{acc}, v{d}")
    a(f"v_cmp_ne_u32 vcc, 0, v{acc}")
    a("s_or_b32 s69, vcc_lo, vcc_hi"); a("s_ff1_i32_b32 s69, s69")
    a(f"v_mov_b32 v{d}, s69")
    a(f"ds_write_b32 v{vSxw}, v{d}")
    a("s_waitcnt lgkmcnt(0)")
    a("s_barrier")
    if ptrace: a("s_memrealtime s[100:101]"); a("s_waitcnt lgkmcnt(0)"); a("v_writelane_b32 v167, s100, 5")
    a(f"ds_read_b128 v[{t[4]}:{t[7]}], v{vSx}")
    a(f"ds_read_b128 v[{vList[0]}:{vList[3]}], v{t[0]} offset:{BT}")
    if prio: a(f"s_setprio {prio}")
    a("s_waitcnt lgkmcnt(1)")
    a(f"v_min3_u32 v{t[4]}, v{t[4]}, v{t[5]}, v{t[6]}"); a(f"v_min3_u32 v{t[4]}, v{t[4]}, v{t[7]}, s{sS}")
    a("s_waitcnt lgkmcnt(0)")
    a(f"v_readfirstlane_b32 s{sS}, v{t[4]}")
    for j in range(4): a(f"v_lshl_add_u32 v{vList[j]}, v{vList[j]}, 16, s92")
    a(f"s_and_b32 s{sTau}, s{sS}, {-NSP & 0xffffffff}")
    for j in range(4): a(f"v_readlane_b32 s{sSet[0]+j}, v{vList[j]}, s{sTau}")
    a(f"s_lshr_b32 s98, s{sTau}, {LG}"); a(f"s_lshl_b32 s98, s98, 1")
    st(94 if not stamp else 30)
    def issue(par, k):
        dd, kk = divmod(k, 8); pp = (par+dd) % RT
        r = RING + (pp*8+kk)*4
        srd_, vo = ("s[16:19]", vKoff) if kk < 4 else ("s[20:23]", vVoff)
        a(f"buffer_load_dwordx4 v[{r}:{r+3}], v{vo}, {srd_}, s{sSet[pp]+(kk&3)} offen{fp}")
    def body(tag, N, par):
        dmax = (7+N)//8
        a(f"L_{tag}{par}:")
        a(f"s_add_u32 s{sTmp}, s{sTau}, {dmax}")
        a(f"v_readlane_b32 s{sPack}, v{vPackL}, s{sTau}")
        stt = sSet[(par+dmax)%RT]
        for j in range(4): a(f"v_readlane_b32 s{stt+j}, v{vList[j]}, s{sTmp}")
        for j in range(4): a(f"v_bfe_u32 v{vS[j]}, s{sPack}, v{vSh[j]}, 4")
        if trace:
            a("s_memrealtime s[100:101]"); a("s_waitcnt lgkmcnt(0)"); a(f"s_mov_b32 m0, s{sTau}"); a(f"v_writelane_b32 v{vEff}, s100, m0")
        a(f"s_sub_u32 s69, s{sT}, s{sTau}")
        if usemode:
            a("s_waitcnt lgkmcnt(0)"); a(f"v_readfirstlane_b32 s70, v{vMode}")
            a(f"v_mov_b32 v{vX}, s69"); a(f"ds_write_b32 v{vQoff}, v{vX}"); a(f"ds_read_b32 v{vMode}, v{vQoff} offset:4")
            a("s_and_b32 s71, s70, 0xff"); a("s_cmp_le_u32 s69, s71"); a("s_cselect_b32 s70, 0x300, s70")
            a("s_bitcmp1_b32 s70, 8"); a("s_cselect_b64 vcc, -1, 0")
            a(f"s_add_u32 s{sTau}, s{sTau}, 1")
            a("s_bitcmp1_b32 s70, 9")
        else:
            a(f"v_mov_b32 v{vX}, s69"); a(f"ds_write_b32 v{vQoff}, v{vX}")
            if xh or dt: a(f"s_cmp_le_u32 s69, s3"); a("s_cselect_b64 vcc, -1, 0")
            else: a(f"s_cmp_le_u32 s69, {max(tail,tailh)}"); a("s_cselect_b64 vcc, -1, 0")
            if head: a(f"s_cmp_lt_u32 s{sTau}, {head}"); a("s_cselect_b64 vcc, -1, vcc")
            a(f"s_add_u32 s{sTau}, s{sTau}, 1")
            if tailh: a(f"s_cmp_le_u32 s69, {tail}")
        for j in range(4): a(f"v_cmp_gt_u32 s[{sMask[j]}:{sMask[j]+1}], v{vS[j]}, v{vT[0]}")
        for j in range(4): a(f"v_cndmask_b32 v{vS[j]}, v{vNinf}, 0, s[{sMask[j]}:{sMask[j]+1}]")
        def wait_issue(k):
            if usemode:
                a("s_cbranch_vccnz 3"); a("s_cbranch_scc0 1"); a(f"s_waitcnt vmcnt({NLO-1})"); a(f"s_waitcnt vmcnt({NP-1})")
                a("s_cbranch_scc1 1"); a(f"s_waitcnt vmcnt({NHI-1})")
            else:
                a("s_cbranch_vccnz 1"); a(f"s_waitcnt vmcnt({NP-1})")
                if tailh: a("s_cbranch_scc1 1"); a(f"s_waitcnt vmcnt({NHI-1})")
            a(f"s_waitcnt vmcnt({N-1})"); issue(par, k+N)
        def dpp(j):
            for i in range(4):
                a(f"v_fmac_f32_dpp v{vS[j]}, v{vD[j%3]+i}, v{vScale} quad_perm:[{i},{i},{i},{i}] row_mask:0xf bank_mask:0xf")
        for j in range(4):
            r = RING + (par*8+j)*4
            wait_issue(j)
            a(f"v_mfma_f32_16x16x32_bf16 v[{vD[j%3]}:{vD[j%3]+3}], v[{r}:{r+3}], v[{vQ}:{vQ+3}], 0")
            if j == 2: a("s_nop 1")
            if j >= 2: dpp(j-2)
        dpp(2); dpp(3)
        a(f"v_max3_f32 v{vX}, v{vS[0]}, v{vS[1]}, v{vS[2]}")
        a(f"v_max3_f32 v{vX}, v{vX}, v{vS[3]}, v{vMx}")
        a(f"v_mov_b32 v{vY}, v{vX}"); a("s_nop 1")
        a(f"v_permlane16_swap_b32 v{vY}, v{vX}"); a(f"v_max_f32 v{vX}, v{vX}, v{vY}")
        a(f"v_mov_b32 v{vY}, v{vX}"); a("s_nop 1")
        a(f"v_permlane32_swap_b32 v{vY}, v{vX}"); a(f"v_max_f32 v{vX}, v{vX}, v{vY}")
        a(f"v_sub_f32 v{vAl}, v{vMx}, v{vX}")
        for j in range(4): a(f"v_sub_f32 v{vS[j]}, v{vS[j]}, v{vX}")
        a(f"v_exp_f32 v{vAl}, v{vAl}")
        for j in range(4): a(f"v_exp_f32 v{vS[j]}, v{vS[j]}")
        a(f"v_mov_b32 v{vMx}, v{vX}")
        pb = [vD[0]+j for j in range(4)]
        for j in range(4): a(f"v_cvt_pk_bf16_f32 v{pb[j]}, v{vS[j]}, v{vS[j]}")
        for i in range(8): a(f"v_mul_f32 v{vOa+i}, v{vAl}, v{vOa+i}")
        def ands(j):
            b = vP+2+4*(j&1)
            a(f"v_and_b32 v{b}, v{vM0}, v{pb[j]}"); a(f"v_and_b32 v{b+1}, v{vM1}, v{pb[j]}")
        ands(0); ands(1)
        a(f"v_fma_f32 v{vLs}, v{vLs}, v{vAl}, v{vS[0]}")
        a(f"v_add_f32 v{vS[1]}, v{vS[1]}, v{vS[2]}")
        a(f"v_add_f32 v{vLs}, v{vLs}, v{vS[3]}")
        a(f"v_add_f32 v{vLs}, v{vLs}, v{vS[1]}")
        for j in range(4):
            r = RING + (par*8+4+j)*4; b = vP+2+4*(j&1)
            wait_issue(4+j)
            a(f"v_mfma_f32_16x16x32_bf16 v[{vOa}:{vOa+3}], v[{r}:{r+3}], v[{b}:{b+3}], v[{vOa}:{vOa+3}]")
            a(f"v_mfma_f32_16x16x32_bf16 v[{vOb}:{vOb+3}], v[{r}:{r+3}], v[{b-2}:{b+1}], v[{vOb}:{vOb+3}]")
            if j < 2: ands(j+2)
    assert (8 < NM <= 15 or 16 < NM <= 23) and NP <= 8
    a(f"s_cmp_eq_u32 s{sRole}, 0"); a(f"s_cselect_b32 s98, 0, s98")
    if noshared: a("s_mov_b32 s98, 0")
    a(f"s_lshr_b32 s3, s96, 2"); a(f"s_cmp_gt_u32 s3, s{sTau}"); a("s_cselect_b32 s3, s98, 1")
    a("s_cmp_lg_u32 s3, 0"); a("s_cbranch_scc1 L_lst")
    for k in range(NP): issue(0, k)
    a("L_lst:")
    if ptrace: a("s_memrealtime s[100:101]"); a("s_waitcnt lgkmcnt(0)"); a("v_writelane_b32 v167, s100, 6")
    a(f"s_lshl_b32 s75, s{sH}, 9")
    a(f"s_lshl_b32 s{sOutA}, s{sA}, 13"); a(f"s_lshl_b32 s{sOutB}, s{sB}, 13")
    a(f"s_add_u32 s{sOutA}, s{sOutA}, s75"); a(f"s_add_u32 s{sOutB}, s{sOutB}, s75")
    a("s_cmp_lt_i32 s70, 1"); a(f"s_cselect_b32 s70, {OOB}, s{sOutA}")
    a("s_cmp_lt_i32 s71, 1"); a(f"s_cselect_b32 s71, {OOB}, s{sOutB}")
    a(f"v_mov_b32 v152, s71"); a(f"v_mov_b32 v153, s70")
    a(f"v_cndmask_b32 v152, v152, v153, s[66:67]")
    a(f"v_add_u32 v{vQoff}, v{vQoff}, v152")
    a(f"buffer_load_dwordx4 v[{vQ}:{vQ+3}], v{vQoff}, s[24:27], 0 offen")
    a(f"s_sub_u32 s95, s{sCB}, s93"); a(f"s_add_u32 s97, s95, 15"); a(f"s_lshr_b32 s97, s97, 4")
    a(f"s_add_u32 s{sT}, s96, s97")
    for j in range(4): a(f"v_cmp_gt_u32 s[{sMask[j]}:{sMask[j]+1}], s96, v{ee[j]}")
    a(f"s_sub_u32 s75, s{sB}, s{sA}"); a("s_lshl_b32 s97, s75, 7"); a(f"s_add_u32 s97, s97, s{sT}"); a("s_sub_u32 s97, s97, 1")
    for j in range(4): a(f"v_sub_u32 v{yy[j]}, s97, v{ee[j]}")
    a("s_lshl_b32 s75, s75, 11"); a("s_add_u32 s95, s95, s75")
    for j in range(4): a(f"v_cndmask_b32 v{yy[j]}, v{yy[j]}, v{ee[j]}, s[{sMask[j]}:{sMask[j]+1}]")
    a(f"s_lshl_b32 s93, s93, 12"); a("s_add_u32 s93, s93, s72")
    for j in range(4):
        a(f"v_lshl_add_u32 v{ad[j]}, v{yy[j]}, 2, s99")
        a(f"ds_read_b32 v{vList[j]}, v{ad[j]} offset:{BT}")
    a(f"v_mov_b32 v152, s92"); a(f"v_mov_b32 v153, s93"); a(f"v_mov_b32 v154, s94"); a(f"v_mov_b32 v155, s95")
    a(f"s_lshl_b32 s72, s{sTau}, 2"); a(f"s_sub_u32 s72, s{sT}, s72")
    for j in range(4): a(f"v_cndmask_b32 v{qo[j]}, v153, v152, s[{sMask[j]}:{sMask[j]+1}]")
    for j in range(4): a(f"v_cndmask_b32 v{rm[j]}, v155, v154, s[{sMask[j]}:{sMask[j]+1}]")
    for j in range(4): a(f"v_cndmask_b32 v{mu[j]}, 16, 1, s[{sMask[j]}:{sMask[j]+1}]")
    for j in range(4): a(f"v_cmp_gt_u32 s[{sMask[j]}:{sMask[j]+1}], s72, v{ee[j]}")
    a(f"s_add_u32 s{sT}, s72, 3"); a(f"s_lshr_b32 s{sT}, s{sT}, 2")
    a(f"v_mov_b32 v155, {OOB}")
    for j in range(4): a(f"v_mad_i32_i24 v{rm[j]}, v{yy[j]}, -16, v{rm[j]}")
    for j in range(4): a(f"v_cndmask_b32 v{mu[j]}, 0, v{mu[j]}, s[{sMask[j]}:{sMask[j]+1}]")
    a(f"s_add_u32 s{sTmp}, s{sTau}, 1")
    for j in range(4): a(f"v_med3_i32 v{rm[j]}, v{rm[j]}, 0, 4")
    a("s_waitcnt lgkmcnt(0)")
    for j in range(4): a(f"v_lshl_add_u32 v{vList[j]}, v{vList[j]}, 16, v{qo[j]}")
    for j in range(4): a(f"v_cndmask_b32 v{vList[j]}, v155, v{vList[j]}, s[{sMask[j]}:{sMask[j]+1}]")
    for j in range(4): a(f"v_mul_u32_u24 v{rm[j]}, v{rm[j]}, v{mu[j]}")
    for j in range(4): a(f"v_readlane_b32 s{sSet[0]+j}, v{vList[j]}, s{sTau}")
    for j in range(4): a(f"v_readlane_b32 s{sSet[1]+j}, v{vList[j]}, s{sTmp}")
    if RT == 3:
        a(f"s_add_u32 s{sTmp}, s{sTau}, 2")
        for j in range(4): a(f"v_readlane_b32 s{sSet[2]+j}, v{vList[j]}, s{sTmp}")
    a(f"v_lshl_or_b32 v{rm[0]}, v{rm[1]}, 8, v{rm[0]}"); a(f"v_lshl_or_b32 v{rm[2]}, v{rm[3]}, 8, v{rm[2]}")
    a(f"v_lshl_or_b32 v{vPackL}, v{rm[2]}, 16, v{rm[0]}")
    a("s_cmp_lg_u32 s98, 0"); a("s_cbranch_scc1 L_shwg")
    a("s_cmp_eq_u32 s3, 0"); a("s_cbranch_scc1 L_main")
    for k in range(NP): issue(0, k)
    a("L_main:")
    a(f"v_mov_b32 v{vQoff}, {SX+16}")
    e = [160,161,vCtx,162,163,164,165,166,vEff if not trace else 167]
    a(f"s_mul_i32 s70, s{sW}, {WSTR}"); a(f"s_add_u32 s70, s70, {OB}")
    a(f"v_lshl_add_u32 v{e[0]}, v0, 4, s70")
    a(f"s_lshl_b32 s71, s{sW}, 2"); a(f"s_add_u32 s71, s71, {MB}")
    a(f"v_bfe_u32 v{e[1]}, v0, 2, 2"); a(f"v_lshl_add_u32 v{e[1]}, v{e[1]}, 5, s71")
    a(f"s_lshl_b32 s72, s{sW}, 5"); a(f"s_add_u32 s72, s72, {MB}"); a(f"v_mov_b32 v{e[2]}, s72")
    a(f"s_lshl_b32 s72, s{sW}, 6"); a(f"s_add_u32 s72, s72, {OB}")
    a(f"v_lshl_add_u32 v{e[3]}, v{vT[0]}, 8, s72")
    a(f"v_and_b32 v{e[4]}, 1, v0"); a(f"v_lshl_add_u32 v{e[3]}, v{e[4]}, 5, v{e[3]}")
    a(f"v_bfe_u32 v{e[4]}, v0, 2, 2"); a(f"v_lshl_add_u32 v{e[3]}, v{e[4]}, 2, v{e[3]}")
    a(f"v_bfe_u32 v{e[4]}, v0, 1, 1"); a(f"v_mul_u32_u24 v{e[4]}, {ESTR}, v{e[4]}"); a(f"v_add_u32 v{e[3]}, v{e[3]}, v{e[4]}")
    for w in range(1,4): a(f"v_add_u32 v{e[3+w]}, {w*WSTR}, v{e[3]}")
    a(f"s_lshl_b32 s72, s{sW}, 8"); a(f"s_add_u32 s72, s72, {SH}")
    a(f"v_lshl_add_u32 v{e[7]}, v{vT[0]}, 6, s72")
    a(f"v_bfe_u32 v{e[8]}, v0, 1, 2"); a(f"v_lshl_add_u32 v{e[7]}, v{e[8]}, 4, v{e[7]}")
    a(f"v_bfe_u32 v{e[8]}, v0, 3, 1"); a(f"v_lshl_add_u32 v{e[7]}, v{e[8]}, 3, v{e[7]}")
    a(f"v_and_b32 v{e[8]}, 1, v0"); a(f"v_lshl_add_u32 v{e[7]}, v{e[8]}, 2, v{e[7]}")
    a(f"s_cmp_ge_u32 s{sW}, 2"); a(f"s_cselect_b32 s75, s{sOutB}, s{sOutA}")
    a(f"s_and_b32 s70, s{sW}, 1"); a("s_lshl_b32 s70, s70, 8"); a("s_add_u32 s75, s75, s70")
    a(f"v_lshlrev_b32 v{e[8]}, 2, v0")
    if onlyduty: a(f"s_mov_b32 s{sT}, 0")
    if dt:
        a(f"s_and_b32 s3, s{sH}, 3"); a("s_cmp_eq_u32 s3, 1"); a(f"s_cselect_b32 s3, {dt[1]}, {dt[0]}"); a(f"s_cselect_b32 s70, {dt[2]}, {tail}")
        a(f"s_cmp_eq_u32 s{sRole}, 0"); a(f"s_cselect_b32 s3, s70, s3")
    if xh:
        a("s_getreg_b32 s3, hwreg(HW_REG_XCC_ID, 0, 3)"); a(f"s_lshr_b32 s3, {xh[0]}, s3"); a("s_bitcmp1_b32 s3, 0"); a(f"s_cselect_b32 s3, {xh[1]}, {xh[2]}")
    a(f"s_cmp_ge_u32 s{sTau}, s{sT}"); a("s_cbranch_scc1 L_epi")
    for k in range(NP, NM):
        if not head: a(f"s_waitcnt vmcnt({NP-1})")
        issue(0, k)
    for par in range(RT):
        body("p", NM, par)
        a(f"s_cmp_ge_u32 s{sTau}, s{sT}")
        if par < RT-1: a("s_cbranch_scc1 L_epi")
        else: a(f"s_cbranch_scc0 L_p0")
    a("L_epi:")
    st(96)
    a(f"v_mov_b32 v{vX}, 0"); a(f"ds_write_b32 v{vQoff}, v{vX}")
    a(f"v_mov_b32 v{vY}, v{vLs}"); a("s_nop 1")
    a(f"v_permlane16_swap_b32 v{vY}, v{vLs}"); a(f"v_add_f32 v{vLs}, v{vLs}, v{vY}")
    a(f"v_mov_b32 v{vY}, v{vLs}"); a("s_nop 1")
    a(f"v_permlane32_swap_b32 v{vY}, v{vLs}"); a(f"v_add_f32 v{vLs}, v{vLs}, v{vY}")
    a(f"ds_write2_b32 v{e[1]}, v{vMx}, v{vLs} offset0:0 offset1:32")
    a(f"ds_write_b128 v{e[0]}, v[{vOa}:{vOa+3}]")
    a(f"ds_write_b128 v{e[0]}, v[{vOb}:{vOb+3}] offset:{ESTR}")
    a("s_waitcnt vmcnt(0) lgkmcnt(0)")
    a("s_barrier")
    NPART = 4 + (0 if noshared else NSP)
    E = RING
    a(f"ds_read_b128 v[{E}:{E+3}], v{e[2]}"); a(f"ds_read_b128 v[{E+4}:{E+7}], v{e[2]} offset:16")
    a(f"ds_read_b128 v[{E+8}:{E+11}], v{e[2]} offset:128"); a(f"ds_read_b128 v[{E+12}:{E+15}], v{e[2]} offset:144")
    for w in range(4): a(f"ds_read2_b32 v[{E+16+2*w}:{E+17+2*w}], v{e[3+w]} offset0:0 offset1:4")
    for s in range(NPART-4): a(f"ds_read_b32 v{E+25+2*s}, v{e[7]} offset:{1024*s}")
    a(f"s_waitcnt lgkmcnt({NPART+2})")
    a(f"v_max3_f32 v{vX}, v{E}, v{E+1}, v{E+2}")
    i = 3
    while i < NPART:
        if i+1 < NPART: a(f"v_max3_f32 v{vX}, v{vX}, v{E+i}, v{E+i+1}"); i += 2
        else: a(f"v_max_f32 v{vX}, v{vX}, v{E+i}"); i += 1
    for w in range(NPART): a(f"v_sub_f32 v{E+w}, v{E+w}, v{vX}")
    for w in range(NPART): a(f"v_exp_f32 v{E+w}, v{E+w}")
    a(f"s_waitcnt lgkmcnt({NPART})")
    a(f"v_mul_f32 v{vX}, v{E}, v{E+8}")
    for w in range(1,NPART): a(f"v_fmac_f32 v{vX}, v{E+w}, v{E+8+w}")
    a(f"v_rcp_f32 v{vX}, v{vX}")
    a("s_waitcnt lgkmcnt(0)")
    for s in range(NPART-4): a(f"v_lshlrev_b32 v{E+24+2*s}, 16, v{E+25+2*s}"); a(f"v_and_b32 v{E+25+2*s}, 0xffff0000, v{E+25+2*s}")
    a(f"v_mul_f32 v{vY}, v{E}, v{E+16}"); a(f"v_mul_f32 v{vAl}, v{E}, v{E+17}")
    for w in range(1,NPART):
        a(f"v_fmac_f32 v{vY}, v{E+w}, v{E+16+2*w}"); a(f"v_fmac_f32 v{vAl}, v{E+w}, v{E+17+2*w}")
    a(f"v_mul_f32 v{vY}, v{vY}, v{vX}"); a(f"v_mul_f32 v{vAl}, v{vAl}, v{vX}")
    a(f"v_cvt_pk_bf16_f32 v{vY}, v{vY}, v{vAl}")
    a(f"buffer_store_dword v{vY}, v{e[8]}, s[36:39], s75 offen")
    a("s_branch L_fin")

    a("L_coll:")
    a("s_waitcnt vmcnt(0) lgkmcnt(0)")
    a("s_barrier")
    a(f"ds_read_b128 v[{t[4]}:{t[7]}], v{vSx}")
    a(f"s_lshr_b32 s{sS}, s{sS}, 6")
    a("s_waitcnt lgkmcnt(0)")
    a(f"v_min3_u32 v{t[4]}, v{t[4]}, v{t[5]}, v{t[6]}"); a(f"v_min3_u32 v{t[4]}, v{t[4]}, v{t[7]}, s{sS}")
    a("v_lshlrev_b32 v1, 4, v0")
    a(f"v_readfirstlane_b32 s{sS}, v{t[4]}")
    a("v_and_b32 v4, 3, v0"); a("v_lshlrev_b32 v4, 5, v4"); a("v_lshrrev_b32 v5, 2, v0"); a("v_lshl_add_u32 v4, v5, 2, v4")
    a(f"v_add_u32 v4, {MB+16}, v4")
    a(f"s_lshr_b32 s{sS}, s{sS}, {LG}"); a(f"s_lshl_b32 s98, s{sS}, 1")
    st(30)
    def controller():
        a(f"v_mov_b32 v2, {SX+16}")
        for c,(R,rules) in enumerate(ctl):
            a(f"L_k{c}:"); a(f"s_sleep {csleep}"); a("ds_read_b32 v3, v2"); a("s_waitcnt lgkmcnt(0)"); a("v_readfirstlane_b32 s71, v3")
            a(f"s_cmp_gt_u32 s71, {R}"); a(f"s_cbranch_scc1 L_k{c}")
            a(f"s_cmp_le_u32 s71, 1"); a("s_cbranch_scc1 L_kend")
            a("s_mov_b64 exec, 1"); a("v_mov_b32 v3, 1")
            a(f"buffer_atomic_add v3, off, s[84:87], 0 offset:{128+4*c} sc0")
            a("s_waitcnt vmcnt(0)"); a("v_readfirstlane_b32 s71, v3")
            code = {"L":0x200, "M":0, "H":0x100, "X":0x300}
            for i,(th,lv,tl) in enumerate(rules):
                if i == 0: a(f"s_mov_b32 s72, {code[lv]|tl}")
                else: a(f"s_cmp_ge_u32 s71, {th}"); a(f"s_cselect_b32 s72, {code[lv]|tl}, s72")
            a("v_mov_b32 v3, s72"); a("ds_write_b32 v2, v3 offset:4")
            a("s_mov_b64 exec, -1")
        if hsw is not None:
            a(f"L_hs:"); a(f"s_sleep {csleep}"); a("ds_read_b32 v3, v2"); a("s_waitcnt lgkmcnt(0)"); a("v_readfirstlane_b32 s71, v3")
            a(f"s_cmp_gt_u32 s71, {hsw}"); a(f"s_cbranch_scc1 L_hs")
            a(f"v_mov_b32 v3, {tail}"); a("ds_write_b32 v2, v3 offset:4")
        a("L_kend:")
        if fb is not None:
            thH, thL, bias, tlH, tlL, fsl = fb["H"], fb["L"], fb["bias"], fb.get("tH", tail), fb.get("tL", tail), fb.get("sleep", 16)
            every = fb.get("every", 1)
            a(f"s_sub_u32 s60, s{sP}, 3"); a(f"s_cmp_eq_u32 s60, s{sH}"); a("s_cselect_b32 s60, -1, 0")
            a(f"s_cmp_lt_u32 s{sH}, 8"); a("s_cselect_b32 s60, s60, 0")
            a(f"s_lshl_b32 s61, s{sH}, 2")
            a("s_mov_b64 exec, 1")
            a("L_fb:")
            a(f"s_sleep {fsl}")
            a("buffer_load_dwordx4 v[12:15], off, s[84:87], 0 offset:128 sc1")
            a("buffer_load_dwordx4 v[16:19], off, s[84:87], 0 offset:144 sc1")
            a("ds_read_b32 v3, v2"); a("s_waitcnt lgkmcnt(0)"); a("v_readfirstlane_b32 s71, v3")
            a("s_add_u32 s62, s71, 1")
            a("s_cmp_eq_u32 s60, 0"); a("s_cbranch_scc1 L_fb1")
            a("s_cmp_ge_u32 s62, s60"); a("s_cbranch_scc1 L_fb1")
            a("s_cmp_gt_u32 s62, 0x1000"); a("s_cbranch_scc1 L_fb1")
            a(f"s_sub_u32 s60, s62, {every-1}"); a("s_max_i32 s60, s60, 1"); a("v_mov_b32 v10, s62")
            if not fb.get("now"): a("buffer_store_dword v10, off, s[84:87], s61 offset:128 sc1")
            a("L_fb1:")
            a("s_waitcnt vmcnt(0)")
            a("v_add3_u32 v20, v12, v13, v14"); a("v_min3_u32 v21, v12, v13, v14")
            a("v_add3_u32 v20, v20, v15, v16"); a("v_min3_u32 v21, v21, v15, v16")
            a("v_add3_u32 v20, v20, v17, v18"); a("v_min3_u32 v21, v21, v17, v18")
            a("v_add_u32 v20, v20, v19"); a("v_min_u32 v21, v21, v19")
            a("s_lshl_b32 s62, s62, 3"); a(f"s_add_u32 s62, s62, {bias}")
            a("v_readfirstlane_b32 s63, v20"); a("v_readfirstlane_b32 s64, v21")
            a("s_sub_u32 s62, s62, s63")
            a(f"s_cmp_ge_i32 s62, {thH}"); a(f"s_cselect_b32 s65, {0x100|tlH}, {tail}")
            a(f"s_cmp_le_i32 s62, {-thL}"); a(f"s_cselect_b32 s65, {0x200|tlL}, s65")
            if "X" in fb: a(f"s_cmp_ge_i32 s62, {fb['X']}"); a(f"s_cselect_b32 s65, {0x300}, s65")
            a("s_cmp_eq_u32 s64, 0"); a(f"s_cselect_b32 s65, {tail}, s65")
            a("s_cmp_gt_u32 s71, 0x1000"); a(f"s_cselect_b32 s65, {tail}, s65")
            a("v_mov_b32 v3, s65"); a("ds_write_b32 v2, v3 offset:4")
            a(f"s_cmp_gt_u32 s71, {wake}"); a("s_cbranch_scc1 L_fb")
            a("s_mov_b64 exec, -1")
    if noshared: controller()
    if not noshared:
        a("s_cmp_eq_u32 s98, 0"); a("s_cbranch_scc1 L_c2")
        a(f"s_cmp_eq_u32 s{sRole}, 0"); a("s_cbranch_scc1 L_c2")
        lK = [8,9,10,11]; lV = [12,13,14,15]; lL = 16
        a(f"s_mul_i32 s71, s98, s{sP}"); a("s_lshl_b32 s71, s71, 3")
        a(f"v_lshl_add_u32 v20, v0, 3, s71")
        a(f"ds_read_b64 v[{lL}:{lL+1}], v20 offset:{BT}")
        a("v_and_b32 v21, 15, v0"); a("v_lshrrev_b32 v22, 4, v0")
        for q in range(4):
            a(f"v_add_u32 v23, {4*q}, v22")
            a(f"v_lshlrev_b32 v25, 12, v23")
            if q: a(f"v_subrev_u32 v25, {1024*q}, v25")
            a(f"v_xor_b32 v24, v23, v21"); a(f"v_lshl_add_u32 v{lK[q]}, v24, 4, v25")
            a(f"v_and_b32 v24, 7, v23"); a("v_lshlrev_b32 v24, 1, v24"); a("v_xor_b32 v24, v24, v21"); a(f"v_lshl_add_u32 v{lV[q]}, v24, 4, v25")
        a(f"s_lshl_b32 s70, s{sH}, 8")
        a("s_waitcnt lgkmcnt(0)")
        a(f"v_lshl_add_u32 v{lL}, v{lL}, 16, s70"); a(f"v_lshl_add_u32 v{lL+1}, v{lL+1}, 16, s70")
        a("s_mov_b32 s72, 0")
        a("s_mov_b32 s99, 0")
        def lstage():
            a(f"v_readlane_b32 s50, v{lL}, s72"); a(f"v_readlane_b32 s51, v{lL+1}, s72")
            a("s_and_b32 s75, s72, 3"); a("s_lshl_b32 s75, s75, 14"); a("s_add_u32 s72, s72, 1")
            for b in range(2):
                for (srd_, vo, off) in (("s[16:19]", lK, 0), ("s[20:23]", lV, 8192)):
                    a(f"s_add_u32 m0, s75, {off+4096*b}"); a("s_nop 0")
                    for q in range(4): a(f"buffer_load_dwordx4 v{vo[q]}, {srd_}, s{50+b} offen offset:{1024*q}{fs} lds")
        a("L_lp:")
        lstage()
        a(f"s_min_u32 s71, s98, {DS}"); a("s_cmp_lt_u32 s72, s71"); a("s_cbranch_scc1 L_lp")
        a("L_ll:")
        a("s_sub_u32 s71, s72, s99")
        for dd in range(DS, 1, -1):
            a(f"s_cmp_eq_u32 s71, {dd}"); a(f"s_cbranch_scc1 L_lw{dd}")
        a("s_waitcnt vmcnt(0)")
        for dd in range(2, DS+1):
            a(f"L_lw{dd}:"); a(f"s_waitcnt vmcnt({16*(dd-1)})")
        a("s_barrier")
        a("s_add_u32 s99, s99, 1")
        a("s_cmp_ge_u32 s72, s98"); a("s_cbranch_scc1 L_ln")
        lstage()
        a("L_ln:")
        a("s_cmp_lt_u32 s99, s98"); a("s_cbranch_scc1 L_ll")
        a(f"s_mul_i32 s70, s{sH}, {NSP}"); a(f"s_add_u32 s70, s70, s{sP}")
        a(f"s_lshl_b32 s71, s70, 14")
        a(f"v_mul_u32_u24 v23, {RSTR-256}, v22"); a("v_add_u32 v23, v23, v1")
        a("v_lshlrev_b32 v24, 3, v0")
        a(f"v_add_u32 v25, {MLST}, v24")
        a("s_barrier"); a("s_barrier")
        if nostore: a("s_branch L_c2")
        a(f"ds_read_b64 v[26:27], v25")
        for w in range(2):
            for dt in range(8): a(f"ds_read_b128 v[{64+32*w+4*dt}:{67+32*w+4*dt}], v23 offset:{STG+4*RSTR*(8*w+dt)}")
            for dt in range(8):
                a(f"s_waitcnt lgkmcnt({7-dt})")
                a(f"buffer_store_dwordx4 v[{64+32*w+4*dt}:{67+32*w+4*dt}], v1, s[88:91], s71 offen offset:{1024*(dt&3)}{sfl}")
                if dt&3 == 3: a("s_add_u32 s71, s71, 4096")
                if sgap: a(f"s_waitcnt vmcnt({sgap-1})")
        a(f"s_lshl_b32 s72, s70, 9"); a(f"s_add_u32 s72, s72, {WSML}")
        a(f"buffer_store_dwordx2 v[26:27], v24, s[88:91], s72 offen{sfl}")
        a("s_lshl_b32 s70, s70, 2"); a("v_mov_b32 v2, 1")
        a("s_waitcnt vmcnt(0)")
        if wbl: a("buffer_wbl2 sc1"); a("s_waitcnt vmcnt(0)")
        a("s_mov_b64 exec, 1")
        a("buffer_store_dword v2, off, s[84:87], s70 sc1")
        a("s_mov_b64 exec, -1")
        if stamp: a("s_memrealtime s[100:101]")
        a("L_c2:")
        controller()
        if not nocoll: a("s_cmp_lg_u32 s98, 0"); a("s_cbranch_scc1 L_c1")
        for i in range(4*NSP): a(f"v_mov_b32 v{64+i}, 0")
        a("v_mov_b32 v8, 0xf149f2ca"); a("v_mov_b32 v9, 0")
        a(f"v_cmp_gt_u32 vcc, {4*NSP}, v0"); a("s_and_saveexec_b64 s[60:61], vcc")
        a("s_branch L_c3")
        a("L_c1:")
        a("L_c4:")
        if tpoll is not None: a(f"s_sleep {tsleep}"); a(f"buffer_load_dword v10, off, s[84:87], 0 offset:192{tpoll}"); a("s_waitcnt vmcnt(0)")
        else: a("s_sleep 8")
        a("ds_read_b32 v3, v2"); a("s_waitcnt lgkmcnt(0)"); a("v_readfirstlane_b32 s71, v3")
        a(f"s_cmp_gt_u32 s71, {wake}"); a("s_cbranch_scc1 L_c4")
        a(f"s_mul_i32 s70, s{sH}, {4*NSP}")
        if nopoll: a("s_branch L_ready")
        a("L_poll:")
        ld = {1:"dword v64", 2:"dwordx2 v[64:65]", 4:"dwordx4 v[64:67]"}[NSP]
        a(f"buffer_load_{ld}, off, s[84:87], s70 sc1")
        a("s_waitcnt vmcnt(0)")
        for s in range(1,NSP): a(f"v_and_b32 v64, v64, v{64+s}")
        a("s_nop 0"); a("v_readfirstlane_b32 s71, v64")
        a("s_cmp_lg_u32 s71, 0"); a("s_cbranch_scc1 L_ready")
        a(f"s_sleep {sleep}"); a("s_branch L_poll")
        a("L_ready:")
        if inv: a("buffer_inv sc1"); a("s_waitcnt vmcnt(0)")
        a(f"s_mul_i32 s70, s{sH}, {NSP*16384}")
        a(f"v_mov_b32 v2, s{sB}"); a(f"v_mov_b32 v3, s{sA}"); a("v_cmp_gt_u32 vcc, 32, v0")
        a("v_and_b32 v6, 31, v0"); a("v_lshlrev_b32 v6, 4, v6")
        a("v_cndmask_b32 v7, v2, v3, vcc"); a("v_lshl_add_u32 v7, v7, 9, v6")
        for s in range(NSP):
            if not noO: a(f"buffer_load_dwordx4 v[{64+4*s}:{67+4*s}], v7, s[88:91], s70 offen{cfl}")
            if s+1 < NSP: a("s_add_u32 s70, s70, 16384")
        a("v_and_b32 v6, 2, v0"); a("v_cmp_eq_u32 vcc, 0, v6")
        a("v_and_b32 v6, 1, v0"); a("s_nop 0")
        a("v_cndmask_b32 v2, v2, v3, vcc")
        a("v_lshl_add_u32 v2, v2, 1, v6"); a("v_lshl_add_u32 v2, v5, 6, v2"); a("v_lshlrev_b32 v2, 3, v2")
        a(f"s_mul_i32 s70, s{sH}, {NSP*512}"); a(f"s_add_u32 s70, s70, {WSML}")
        a(f"v_cmp_gt_u32 vcc, {4*NSP}, v0"); a("s_and_saveexec_b64 s[60:61], vcc")
        if not noml: a(f"buffer_load_dwordx2 v[8:9], v2, s[88:91], s70 offen{cfl}")
        a("s_waitcnt vmcnt(0)")
        a("L_c3:")
        a("ds_write2_b32 v4, v8, v9 offset0:0 offset1:32")
        a("s_mov_b64 exec, s[60:61]")
        for s in range(NSP): a(f"ds_write_b128 v1, v[{64+4*s}:{67+4*s}] offset:{SH+1024*s}")
    st(96)
    a("s_waitcnt lgkmcnt(0)")
    a("s_barrier")
    a("s_branch L_fin")

    a("L_shwg:")
    wKa = [26,27,28,29]; wVa = [30+i for i in range(8)]
    wMx,wLs,wAl,wX,wY = 40,41,42,43,39
    wQ = 44; wP = 60; wO = 96; wF = 128; wD = 160; u = [128+i for i in range(10)]
    sTs = 98; sTa = 99
    a(f"v_and_b32 v{u[0]}, 15, v0")
    g_ = vT[0]
    a(f"s_lshl_b32 s70, s{sW}, 3")
    a(f"v_lshrrev_b32 v{u[2]}, 1, v{u[0]}"); a(f"v_add_u32 v{u[2]}, s70, v{u[2]}")
    a(f"v_lshlrev_b32 v{u[3]}, 2, v{u[2]}")
    a(f"ds_bpermute_b32 v{u[3]}, v{u[3]}, v{vCtx}")
    a(f"v_and_b32 v{u[4]}, 1, v0"); a(f"v_lshlrev_b32 v{u[4]}, 8, v{u[4]}")
    a(f"v_lshl_add_u32 v{u[4]}, v{g_}, 4, v{u[4]}"); a(f"v_lshl_add_u32 v{u[4]}, v{u[2]}, 13, v{u[4]}")
    a(f"v_mov_b32 v{u[5]}, {OOB}")
    a(f"s_lshl_b32 s71, s{sH}, 9")
    a("s_waitcnt lgkmcnt(0)")
    a(f"v_cmp_gt_i32 vcc, 1, v{u[3]}")
    a(f"v_xor_b32 v{u[6]}, v{g_}, v{u[0]}"); a(f"v_lshlrev_b32 v{u[6]}, 4, v{u[6]}")
    a(f"v_cndmask_b32 v{u[4]}, v{u[4]}, v{u[5]}, vcc")
    for k in range(4): a(f"buffer_load_dwordx4 v[{wQ+4*k}:{wQ+4*k+3}], v{u[4]}, s[24:27], s71 offen offset:{64*k}")
    a(f"v_lshl_add_u32 v{wKa[0]}, v{u[0]}, 8, v{u[6]}")
    for k in range(1,4): a(f"v_xor_b32 v{wKa[k]}, {64*k}, v{wKa[0]}")
    a(f"v_bfe_u32 v{u[6]}, v0, 2, 2"); a(f"v_lshl_add_u32 v{u[6]}, v{g_}, 2, v{u[6]}")
    a(f"v_and_b32 v{u[7]}, 7, v{u[6]}"); a(f"v_lshlrev_b32 v{u[7]}, 5, v{u[7]}")
    a(f"v_lshl_add_u32 v{u[7]}, v{u[6]}, 8, v{u[7]}")
    a(f"v_and_b32 v{u[6]}, 3, v0"); a(f"v_lshl_add_u32 v{wVa[0]}, v{u[6]}, 3, v{u[7]}")
    for k in range(1,8): a(f"v_xor_b32 v{wVa[k]}, {32*k}, v{wVa[0]}")
    for i in range(32): a(f"v_mov_b32 v{wO+i}, 0")
    a(f"v_mov_b32 v{wMx}, 0xf149f2ca"); a(f"v_mov_b32 v{wLs}, 0")
    a(f"s_mov_b32 s92, 0x{SC:08x}")
    a(f"s_mov_b32 s{sTa}, 0")
    a(f"s_sub_u32 s93, s{sTs}, {pre}"); a("s_cselect_b32 s93, 0, s93")
    a("s_waitcnt vmcnt(0)")
    fq = lambda k,b: wF+8*k+4*b
    for sl in range(4):
        base = sl*16384
        a(f"L_sh{sl}:")
        a(f"s_cmp_eq_u32 s{sTa}, s93")
        a("s_barrier")
        for k in range(4):
            for b in range(2):
                a(f"ds_read_b128 v[{fq(k,b)}:{fq(k,b)+3}], v{wKa[k]} offset:{base+4096*b}")
        a(f"s_cbranch_scc1 L_shx{sl}")
        a(f"L_shy{sl}:")
        a(f"s_add_u32 s{sTa}, s{sTa}, 1")
        for k in range(4):
            a(f"s_waitcnt lgkmcnt({6-2*k+4*k})")
            for b in range(2):
                c = "0" if k == 0 else f"v[{wD+4*b}:{wD+4*b+3}]"
                a(f"v_mfma_f32_16x16x32_bf16 v[{wD+4*b}:{wD+4*b+3}], v[{fq(k,b)}:{fq(k,b)+3}], v[{wQ+4*k}:{wQ+4*k+3}], {c}")
            for b in range(2):
                dt = 2*k+b
                for bb in range(2):
                    r = fq(k,b)+2*bb
                    a(f"ds_read_b64_tr_b16 v[{r}:{r+1}], v{wVa[dt]} offset:{base+8192+4096*bb}")
        a("s_nop 2")
        a(f"v_max3_f32 v{wX}, v{wD}, v{wD+1}, v{wD+2}")
        a(f"v_max3_f32 v{wX}, v{wX}, v{wD+3}, v{wD+4}")
        a(f"v_max3_f32 v{wY}, v{wD+5}, v{wD+6}, v{wD+7}"); a(f"v_max_f32 v{wX}, v{wX}, v{wY}")
        a(f"v_mov_b32 v{wY}, v{wX}"); a("s_nop 1")
        a(f"v_permlane16_swap_b32 v{wY}, v{wX}"); a(f"v_max_f32 v{wX}, v{wX}, v{wY}")
        a(f"v_mov_b32 v{wY}, v{wX}"); a("s_nop 1")
        a(f"v_permlane32_swap_b32 v{wY}, v{wX}"); a(f"v_max_f32 v{wX}, v{wX}, v{wY}")
        a(f"v_mul_f32 v{wX}, s92, v{wX}"); a(f"v_max_f32 v{wX}, v{wX}, v{wMx}")
        a(f"v_sub_f32 v{wAl}, v{wMx}, v{wX}")
        for i in range(8): a(f"v_fma_f32 v{wD+i}, v{wD+i}, s92, -v{wX}")
        a(f"v_exp_f32 v{wAl}, v{wAl}")
        for i in range(8): a(f"v_exp_f32 v{wD+i}, v{wD+i}")
        a(f"v_mov_b32 v{wMx}, v{wX}")
        for i in range(4): a(f"v_cvt_pk_bf16_f32 v{wP+i}, v{wD+2*i}, v{wD+2*i+1}")
        def omul(dt):
            for i in range(4): a(f"v_mul_f32 v{wO+4*dt+i}, v{wAl}, v{wO+4*dt+i}")
        omul(0); omul(1)
        a(f"v_fma_f32 v{wLs}, v{wLs}, v{wAl}, v{wD}")
        a("s_waitcnt lgkmcnt(0)")
        for dt in range(8):
            r = fq(dt>>1, dt&1)
            a(f"v_mfma_f32_16x16x32_bf16 v[{wO+4*dt}:{wO+4*dt+3}], v[{r}:{r+3}], v[{wP}:{wP+3}], v[{wO+4*dt}:{wO+4*dt+3}]")
            if dt+2 < 8: omul(dt+2)
            if dt < 7: a(f"v_add_f32 v{wLs}, v{wLs}, v{wD+dt+1}")
        a(f"s_cmp_ge_u32 s{sTa}, s{sTs}")
        if sl < 3: a("s_cbranch_scc1 L_shout")
        else: a("s_cbranch_scc0 L_sh0")
    a("L_shout:")
    a("s_barrier")
    a(f"v_mov_b32 v{wY}, v{wLs}")
    a(f"s_mul_i32 s72, s{sW}, {16*RSTR}"); a(f"s_add_u32 s72, s72, {STG}")
    a(f"v_and_b32 v{wD+2}, 15, v0"); a(f"v_lshl_add_u32 v{wD+1}, v{g_}, 4, s72"); a(f"v_mul_u32_u24 v{wD+2}, {RSTR}, v{wD+2}"); a(f"v_add_u32 v{wD+1}, v{wD+1}, v{wD+2}")
    a(f"v_permlane16_swap_b32 v{wY}, v{wLs}"); a(f"v_add_f32 v{wLs}, v{wLs}, v{wY}")
    a(f"v_mov_b32 v{wY}, v{wLs}")
    a(f"v_and_b32 v{wD}, 15, v0")
    a(f"s_lshl_b32 s72, s{sW}, 7"); a(f"s_add_u32 s72, s72, {MLST}")
    a(f"v_permlane32_swap_b32 v{wY}, v{wLs}"); a(f"v_add_f32 v{wLs}, v{wLs}, v{wY}")
    a(f"v_lshl_add_u32 v{wD}, v{wD}, 3, s72")
    for k in range(4):
        for i in range(4): a(f"v_cvt_pk_bf16_f32 v{wF+4*k+i}, v{wO+8*k+2*i}, v{wO+8*k+2*i+1}")
        a(f"ds_write_b128 v{wD+1}, v[{wF+4*k}:{wF+4*k+3}] offset:{64*k}")
    a(f"ds_write_b64 v{wD}, v[{wMx}:{wMx+1}]")
    for i in range(8): a(f"v_mov_b32 v{vOa+i}, 0")
    a(f"v_mov_b32 v{vMx}, 0xf149f2ca"); a(f"v_mov_b32 v{vLs}, 0")
    for j in range(3): a(f"v_mov_b32 v{vP+4*j}, 0"); a(f"v_mov_b32 v{vP+4*j+1}, 0")
    a("s_waitcnt lgkmcnt(0)")
    a("s_barrier")
    if stamp: a("s_memrealtime s[100:101]")
    a("s_branch L_main")
    for sl in range(4):
        a(f"L_shx{sl}:")
        for k in range(NP): issue(0, k)
        a(f"s_branch L_shy{sl}")
    a("L_fin:")
    if ptrace: vEff = 167
    if trace or ptrace:
        a("s_mov_b64 exec, -1")
        a(f"s_mul_i32 s70, s2, 5"); a(f"s_add_u32 s70, s70, s{sW}"); a("s_lshl_b32 s70, s70, 8"); a(f"s_add_u32 s70, s70, {1<<23}")
        a("v_lshl_add_u32 v14, v0, 2, s70")
        a(f"global_store_dword v14, v{vEff}, s[78:79]")
    if stamp:
        a("s_mov_b64 exec, 1")
        a("s_memrealtime s[98:99]"); a("s_waitcnt lgkmcnt(0)")
        a(f"s_mul_i32 s70, s2, 5"); a(f"s_add_u32 s70, s70, s{sW}"); a("s_lshl_b32 s70, s70, 5"); a(f"s_add_u32 s70, s70, {1<<22}")
        a("s_getreg_b32 s83, hwreg(HW_REG_XCC_ID)")
        a(f"s_cmp_ge_u32 s{sW}, 4"); a(f"s_cselect_b32 s71, 1, 0"); a(f"s_lshl_b32 s72, s{sRole}, 1"); a("s_add_u32 s71, s71, s72"); a("s_add_u32 s71, s71, 0x7700")
        a("v_mov_b32 v18, s100"); a("v_mov_b32 v19, s2")
        a("v_mov_b32 v10, s82"); a("v_mov_b32 v11, s30"); a("v_mov_b32 v12, s96"); a("v_mov_b32 v13, s98")
        a("v_mov_b32 v14, s70"); a("v_mov_b32 v16, s83"); a(f"v_mov_b32 v17, s71")
        a("global_store_dwordx4 v14, v[10:13], s[78:79]")
        a("global_store_dwordx4 v14, v[16:19], s[78:79] offset:16")
    if calib:
        a("L_cal:"); a("s_memrealtime s[98:99]"); a("s_waitcnt lgkmcnt(0)"); a("s_sub_u32 s98, s98, s82")
        a(f"s_cmp_lt_u32 s98, {calib}"); a("s_cbranch_scc1 L_cal")
    a("L_end:"); a("s_endpgm")
    hdr = open("ref_stub.s").read()
    top = hdr[:hdr.index("; @launch")]
    out = top + f"; @launch grid=({NWG},1,1) block=(320,1,1) lds={LDSZ}\n"
    out += f""".amdgcn_target "amdgcn-amd-amdhsa--gfx950"
.text
.globl {KNAME}
.p2align 8
.type {KNAME},@function
{KNAME}:
""" + "\n".join(("" if x.endswith(":") else "    ")+x for x in L) + f"""
.section .rodata,"a"
.p2align 6
.amdhsa_kernel {KNAME}
  .amdhsa_next_free_vgpr 168
  .amdhsa_next_free_sgpr 102
  .amdhsa_accum_offset 168
  .amdhsa_group_segment_fixed_size 0
  .amdhsa_kernarg_size 64
  .amdhsa_user_sgpr_count 2
  .amdhsa_user_sgpr_kernarg_segment_ptr 1
  .amdhsa_system_sgpr_workgroup_id_x 1
.end_amdhsa_kernel
"""
    return out
if __name__ == "__main__":
    kw = eval("dict(%s)" % (sys.argv[2] if len(sys.argv) > 2 else ""))
    open(sys.argv[1], "w").write(gen(**kw))
```

```python
import sys, math, struct
KNAME = "standalone__paged_block_table_kv_radixattention__sampling_kernel"
KVBYTES = 138412032
OOB = 0x40000000
def f2u(x): return struct.unpack('<I', struct.pack('<f', x))[0]
SC = f2u(math.log2(math.e)/math.sqrt(128.0))

def gen(NP=5, NM=14, tail=5, head=0, NLO=4, NHI=6, ctl=(), csleep=8, xmask=0, iso=0, tpf=0, tpfl='', dt=None, order=1, cpf=1, xh=None, perm=0, hsw=None, fb=None, tpoll=None, tsleep=32, prot=0, hcls=None, hlev='H', htail=None, tailh=0, wbl=0, inv=0, cfl=' sc1', noml=0, noO=0, dlev='M', dtail=None, nst=4, samedst=0, sfl=' sc1', sgap=0, nopoll=0, nocoll=0, nostore=0, hrot=2, NSP=2, fp=" nt", fs=" nt", hmap=0, stamp=False, noshared=False, calib=0, sleep=32, prio=1, wake=3, onlyduty=False, DS=3, pre=2, trace=False, ptrace=False):
    L = []; a = L.append
    usemode = bool(ctl) or fb is not None or dlev != 'M' or dtail is not None or hcls is not None
    NWG = 256
    sW, sH, sP, sA, sB, sCA, sCB, sS, sT, sTau = 40,41,42,43,44,45,46,47,48,49
    RT = 2 if NM <= 15 else 3; sSet = [50, 54, 4]; sPack = 58; sRole = 59; sMask = [60,62,64,66]; sTmp = 68
    sOutA, sOutB = 73, 74
    vKoff, vVoff, vM0, vM1, vShift, vScale, vNinf = 1,2,3,4,5,6,7
    vT = [8,9,10,11]; vList = [12,13,14,15]; vPackL = 16; vMode = 17
    vQ = 18; vOa = 22; vOb = 26; vMx, vLs, vAl, vX, vY = 30,31,32,33,34
    vS = [35,36,37,38]; vQoff = 39
    vD = [40,44,48]; vP = 52; vCtx = 62; vEff = 63
    RING = 64
    t = [64+i for i in range(40)]
    BT = 49152; SX = 65536; MLST = SX+64; LDSZ = MLST+512
    OB = 0; ESTR = 1088; WSTR = 2*ESTR; SH = OB+4*WSTR; MB = SH+NSP*1024; STG = 16384; RSTR = 272
    WSO = 0; WSML = 16*NSP*16*1024; WSZ = WSML + 16*NSP*64*8
    LG = NSP.bit_length()-1
    def srd(d, p, n):
        a(f"s_mov_b32 s{d}, s{p}"); a(f"s_mov_b32 s{d+1}, s{p+1}")
        a(f"s_mov_b32 s{d+2}, {n}"); a(f"s_mov_b32 s{d+3}, 0x20000")
    def st(n):
        if stamp: a(f"s_memrealtime s[{n}:{n+1}]")

    a(f"s_cmp_ge_u32 s2, {NWG}"); a("s_cbranch_scc1 L_end")
    if xmask: a("s_and_b32 s3, s2, 7"); a(f"s_lshr_b32 s3, {xmask}, s3"); a("s_bitcmp0_b32 s3, 0"); a("s_cbranch_scc1 L_end")
    a("s_load_dwordx8 s[4:11], s[0:1], 0")
    a("s_load_dwordx4 s[12:15], s[0:1], 32")
    a("s_load_dwordx4 s[76:79], s[0:1], 48")
    if stamp or calib: a("s_memrealtime s[82:83]")
    a("v_lshrrev_b32 v1, 6, v0")
    a("v_and_b32 v0, 63, v0")
    if hmap == 0:
        if hrot: a(f"s_add_u32 s3, s2, {hrot}"); a(f"s_and_b32 s{sH}, s3, 15")
        else: a(f"s_and_b32 s{sH}, s2, 15")
        a(f"s_lshr_b32 s{sP}, s2, 4")
    elif hmap == 4:
        a(f"s_add_u32 s3, s2, {hrot}"); a("s_and_b32 s3, s3, 3"); a(f"s_bfe_u32 s{sH}, s2, 0x20003"); a(f"s_lshl2_add_u32 s{sH}, s{sH}, s3")
        a("s_bfe_u32 s3, s2, 0x10002"); a(f"s_lshr_b32 s{sP}, s2, 5"); a(f"s_lshl1_add_u32 s{sP}, s{sP}, s3")
    elif hmap == 5:
        a(f"s_add_u32 s3, s2, {hrot}"); a("s_and_b32 s3, s3, 3"); a(f"s_bfe_u32 s{sH}, s2, 0x20003"); a(f"s_lshl2_add_u32 s{sH}, s{sH}, s3")
        a("s_bfe_u32 s3, s2, 0x10002"); a(f"s_lshr_b32 s{sP}, s2, 5"); a(f"s_lshl3_add_u32 s{sP}, s3, s{sP}")
        a(f"s_cmp_eq_u32 s{sP}, 1"); a(f"s_cselect_b32 s3, 8, s{sP}"); a(f"s_cmp_eq_u32 s{sP}, 8"); a(f"s_cselect_b32 s{sP}, 1, s3")
    elif hmap == 2:
        a(f"s_lshr_b32 s{sH}, s2, 4"); a(f"s_and_b32 s{sP}, s2, 15")
    elif hmap == 3:
        a(f"s_lshr_b32 s{sH}, s2, 4"); a(f"s_and_b32 s{sP}, s2, 7"); a(f"s_and_b32 s3, s{sH}, 7")
        a(f"s_cmp_eq_u32 s{sP}, s3"); a(f"s_cselect_b32 s96, 0, s{sP}"); a(f"s_cmp_eq_u32 s{sP}, 0"); a(f"s_cselect_b32 s{sP}, s3, s96")
        a(f"s_lshl_b32 s{sP}, s{sP}, 1"); a("s_bfe_u32 s3, s2, 0x10003"); a(f"s_or_b32 s{sP}, s{sP}, s3")
    elif hmap == 1:
        a(f"s_lshr_b32 s{sH}, s2, 4"); a(f"s_add_u32 s{sP}, s2, s{sH}"); a(f"s_and_b32 s{sP}, s{sP}, 15")
    if prot:
        a(f"s_add_u32 s{sP}, s{sP}, {prot}"); a(f"s_and_b32 s{sP}, s{sP}, 15")
    a(f"v_readfirstlane_b32 s{sW}, v1")
    if cpf:
        if cpf == 1: a(f"s_cmp_lt_u32 s{sW}, 4"); a("s_cbranch_scc1 L_npf")
        a("s_getpc_b64 s[90:91]")
        a("L_pc:")
        a("v_lshlrev_b32 v160, 7, v0")
        for i in range(2):
            if i: a("v_add_u32 v160, 8192, v160")
            a("v_min_u32 v161, L_end-L_pc, v160"); a("v_mov_b32 v163, s91")
            a("v_add_co_u32 v162, vcc, s90, v161"); a("s_nop 1"); a("v_addc_co_u32 v163, vcc, 0, v163, vcc")
            a(f"global_load_dword v{164+i}, v[162:163], off")
        a("L_npf:")
    a(f"s_add_u32 s96, s{sP}, {NSP}"); a(f"s_sub_u32 s97, {31+NSP}, s{sP}"); a(f"s_sub_u32 s3, {2*NSP-1}, s{sP}")
    a(f"s_cmp_lt_u32 s{sP}, {NSP}")
    a(f"s_cselect_b32 s{sRole}, 1, 0")
    a(f"s_cselect_b32 s96, s{sP}, s96"); a(f"s_cselect_b32 s97, s3, s97")
    a(f"v_and_b32 v{t[0]}, 31, v0")
    a(f"v_lshrrev_b32 v{t[1]}, 5, v0"); a(f"v_and_b32 v{t[2]}, 15, v0")
    a(f"v_lshl_add_u32 v{t[1]}, v{t[1]}, 4, v{t[2]}")
    a(f"v_lshlrev_b32 v{t[2]}, 2, v{t[0]}"); a(f"v_lshlrev_b32 v{t[3]}, 2, v{t[1]}")
    a(f"v_lshlrev_b32 v{t[4]}, 4, v{t[0]}")
    a(f"s_lshl_b32 s{sTmp}, s{sW}, 12")
    a(f"v_lshl_add_u32 v{t[5]}, v0, 4, s{sTmp}")
    a("s_waitcnt lgkmcnt(0)")
    if ptrace: a("s_memrealtime s[100:101]"); a("s_waitcnt lgkmcnt(0)"); a("v_writelane_b32 v167, s100, 0")
    srd(32, 12, 128); srd(28, 10, 16384)
    a(f"buffer_load_dword v{vCtx}, v{t[2]}, s[32:35], 0 offen")
    a(f"buffer_load_dword v{t[6]}, v{t[3]}, s[32:35], 0 offen")
    R0 = t[8]; X = [t[12], t[16], t[20], t[24]]
    a(f"buffer_load_dwordx4 v[{R0}:{R0+3}], v{t[4]}, s[28:31], 0 offen")
    for i in range(4): a(f"buffer_load_dwordx4 v[{X[i]}:{X[i]+3}], v{t[5]}, s[28:31], 0 offen offset:{1024*i}")
    srd(16, 6, KVBYTES); srd(20, 8, KVBYTES); srd(24, 4, 262144); srd(36, 14, 262144)
    srd(84, 76, 256); srd(88, 78, WSZ)
    a(f"v_lshrrev_b32 v{vT[0]}, 4, v0")
    u0,u1 = t[28], t[29]
    a(f"v_and_b32 v{u0}, 15, v0"); a(f"v_lshlrev_b32 v{u0}, 4, v{u0}")
    a(f"v_lshl_add_u32 v{vVoff}, v{vT[0]}, 12, v{u0}")
    a(f"v_and_b32 v{u0}, 3, v0"); a(f"v_lshlrev_b32 v{u0}, 4, v{u0}")
    a(f"v_lshl_add_u32 v{u0}, v{vT[0]}, 6, v{u0}")
    a(f"v_bfe_u32 v{u1}, v0, 2, 2"); a(f"v_lshl_add_u32 v{vKoff}, v{u1}, 12, v{u0}")
    a(f"v_bfe_u32 v{u1}, v0, 2, 1"); a(f"v_lshl_add_u32 v{vQoff}, v{u1}, 8, v{u0}")
    a(f"v_and_b32 v{u1}, 1, v0"); a(f"v_lshlrev_b32 v{u1}, 4, v{u1}")
    a(f"v_mov_b32 v{vM0}, 0xffff"); a(f"v_lshlrev_b32 v{vM0}, v{u1}, v{vM0}")
    a(f"v_bfe_i32 v{u1}, v0, 1, 1")
    a(f"v_and_b32 v{vM1}, v{vM0}, v{u1}"); a(f"v_xor_b32 v{vM0}, v{vM0}, v{vM1}")
    a(f"v_and_b32 v{vShift}, 8, v0"); a(f"v_lshrrev_b32 v{vShift}, 1, v{vShift}")
    vSh = [vShift, vT[1], vT[2], vT[3]]
    for j in range(1,4): a(f"v_add_u32 v{vSh[j]}, {8*j}, v{vShift}")
    a(f"v_mov_b32 v{vScale}, 0x{SC:08x}"); a(f"v_mov_b32 v{vNinf}, 0xff800000")
    for i in range(8): a(f"v_mov_b32 v{vOa+i}, 0")
    a(f"v_mov_b32 v{vMx}, 0xf149f2ca"); a(f"v_mov_b32 v{vLs}, 0")
    for j in range(3): a(f"v_mov_b32 v{vP+4*j}, 0"); a(f"v_mov_b32 v{vP+4*j+1}, 0")
    ee = [136+j for j in range(4)]; yy = [140+j for j in range(4)]; ad = [144+j for j in range(4)]; qo = [148+j for j in range(4)]
    rm = [128+j for j in range(4)]; mu = [132+j for j in range(4)]; vSx, vSxw = 157, 158
    a(f"v_lshlrev_b32 v{ee[0]}, 2, v0")
    for j in range(1,4): a(f"v_add_u32 v{ee[j]}, {j}, v{ee[0]}")
    a(f"v_mov_b32 v{vSx}, {SX}")
    a(f"s_lshl_b32 s72, s{sW}, 2"); a(f"s_add_u32 s72, s72, {SX}"); a(f"v_mov_b32 v{vSxw}, s72")
    a(f"v_cmp_eq_u32 s[66:67], 0, v{vShift}")
    code = {"L":0x200, "M":0, "H":0x100, "X":0x300}
    a(f"s_cmp_eq_u32 s{sRole}, 0"); a(f"s_cselect_b32 s75, {tail}, {code[dlev]|(tail if dtail is None else dtail)}")
    a(f"v_mov_b32 v155, {SX+16}"); a(f"v_mov_b32 v{vMode}, s75")
    a(f"ds_write2_b32 v155, v155, v{vMode} offset0:0 offset1:1")
    if ptrace: a("s_memrealtime s[100:101]"); a("s_waitcnt lgkmcnt(0)"); a("v_writelane_b32 v167, s100, 1")
    ko, ks_, d, acc = t[30], t[31], t[32], t[33]
    a("s_waitcnt vmcnt(5)")
    if ptrace: a("s_memrealtime s[100:101]"); a("s_waitcnt lgkmcnt(0)"); a("v_writelane_b32 v167, s100, 2")
    a(f"v_add_u32 v{vEff}, -1, v{vCtx}"); a(f"v_add_u32 v{t[6]}, -1, v{t[6]}")
    a(f"v_min_u32 v{vEff}, 0x7ff, v{vEff}"); a(f"v_min_u32 v{t[6]}, 0x7ff, v{t[6]}")
    a(f"v_lshl_add_u32 v{ko}, v{t[6]}, 5, v{t[1]}"); a(f"v_lshl_add_u32 v{ks_}, v{vEff}, 5, v{t[0]}")
    a(f"v_add_u32 v{vEff}, 1, v{vEff}")
    a(f"v_sub_u32 v{d}, v{ko}, v{ks_}"); a(f"v_lshrrev_b32 v{acc}, 31, v{d}")
    for k in range(1,16):
        a(f"v_sub_u32_dpp v{d}, v{ko}, v{ks_} row_ror:{k} row_mask:0xf bank_mask:0xf")
        a(f"v_alignbit_b32 v{acc}, v{acc}, v{d}, 31")
    a(f"v_bcnt_u32_b32 v{acc}, v{acc}, 0"); a(f"v_mov_b32 v{d}, v{acc}")
    a("s_nop 1")
    a(f"v_permlane32_swap_b32 v{d}, v{acc}"); a(f"v_add_u32 v{acc}, v{d}, v{acc}")
    a(f"v_cmp_eq_u32 s[60:61], s96, v{acc}"); a(f"v_cmp_eq_u32 s[62:63], s97, v{acc}")
    a(f"v_cmp_eq_u32 s[64:65], 0, v{acc}")
    a(f"s_ff1_i32_b32 s{sA}, s60"); a(f"s_ff1_i32_b32 s{sB}, s62"); a("s_ff1_i32_b32 s69, s64")
    if order == 1: a(f"s_min_u32 s3, s{sA}, s{sB}"); a(f"s_max_u32 s{sB}, s{sA}, s{sB}"); a(f"s_mov_b32 s{sA}, s3")
    if order == 2: a(f"s_max_u32 s3, s{sA}, s{sB}"); a(f"s_min_u32 s{sB}, s{sA}, s{sB}"); a(f"s_mov_b32 s{sA}, s3")
    if order == 3: a(f"s_mov_b32 s3, s{sB}"); a(f"s_mov_b32 s{sB}, s{sA}"); a(f"s_mov_b32 s{sA}, s3")
    a(f"v_readlane_b32 s{sCA}, v{vEff}, s{sA}"); a(f"v_readlane_b32 s{sCB}, v{vEff}, s{sB}")
    a(f"v_readlane_b32 s{sS}, v{vEff}, s69")
    a(f"v_readlane_b32 s70, v{vCtx}, s{sA}"); a(f"v_readlane_b32 s71, v{vCtx}, s{sB}")
    a(f"s_cmp_ge_u32 s{sW}, 4"); a("s_cbranch_scc1 L_coll")
    a(f"s_lshl_b32 s99, s{sA}, 9"); a(f"s_lshl_b32 s92, s{sW}, 2")
    a(f"v_lshl_add_u32 v{t[0]}, v0, 4, s99")
    a(f"s_sub_u32 s94, s{sCA}, s92"); a(f"s_sub_u32 s93, 12, s92")
    a(f"s_add_u32 s96, s94, 15"); a(f"s_lshr_b32 s96, s96, 4")
    a(f"s_lshl_b32 s92, s92, 12"); a(f"s_lshl_b32 s72, s{sH}, 8"); a("s_add_u32 s92, s92, s72")
    a(f"s_lshr_b32 s{sS}, s{sS}, 6")
    if ptrace: a("s_memrealtime s[100:101]"); a("s_waitcnt lgkmcnt(0)"); a("v_writelane_b32 v167, s100, 3")
    a("s_waitcnt vmcnt(0)")
    if ptrace: a("s_memrealtime s[100:101]"); a("s_waitcnt lgkmcnt(0)"); a("v_writelane_b32 v167, s100, 4")
    for i in range(4): a(f"ds_write_b128 v{t[5]}, v[{X[i]}:{X[i]+3}] offset:{BT+1024*i}")
    a(f"v_xor_b32 v{acc}, v{X[0]}, v{R0}"); a(f"v_xor_b32 v{d}, v{X[2]}, v{R0}")
    for i in range(2):
        for c in range(4):
            if i == 0 and c == 0: continue
            a(f"v_bitop3_b32 v{acc}, v{acc}, v{X[i]+c}, v{R0+c} bitop3:0xf6")
            a(f"v_bitop3_b32 v{d}, v{d}, v{X[2+i]+c}, v{R0+c} bitop3:0xf6")
    a(f"v_or_b32 v{acc}, v{acc}, v{d}")
    a(f"v_cmp_ne_u32 vcc, 0, v{acc}")
    a("s_or_b32 s69, vcc_lo, vcc_hi"); a("s_ff1_i32_b32 s69, s69")
    a(f"v_mov_b32 v{d}, s69")
    a(f"ds_write_b32 v{vSxw}, v{d}")
    a("s_waitcnt lgkmcnt(0)")
    a("s_barrier")
    if ptrace: a("s_memrealtime s[100:101]"); a("s_waitcnt lgkmcnt(0)"); a("v_writelane_b32 v167, s100, 5")
    a(f"ds_read_b128 v[{t[4]}:{t[7]}], v{vSx}")
    a(f"ds_read_b128 v[{vList[0]}:{vList[3]}], v{t[0]} offset:{BT}")
    if prio: a(f"s_setprio {prio}")
    a("s_waitcnt lgkmcnt(1)")
    a(f"v_min3_u32 v{t[4]}, v{t[4]}, v{t[5]}, v{t[6]}"); a(f"v_min3_u32 v{t[4]}, v{t[4]}, v{t[7]}, s{sS}")
    a("s_waitcnt lgkmcnt(0)")
    a(f"v_readfirstlane_b32 s{sS}, v{t[4]}")
    for j in range(4): a(f"v_lshl_add_u32 v{vList[j]}, v{vList[j]}, 16, s92")
    a(f"s_and_b32 s{sTau}, s{sS}, {-NSP & 0xffffffff}")
    a(f"s_add_u32 s{sTmp}, s{sTau}, 1")
    for j in range(4): a(f"v_readlane_b32 s{sSet[0]+j}, v{vList[j]}, s{sTau}")
    for j in range(NP-4): a(f"v_readlane_b32 s{sSet[1]+j}, v{vList[j]}, s{sTmp}")
    a(f"s_lshr_b32 s98, s{sTau}, {LG}"); a(f"s_lshl_b32 s98, s98, 1")
    st(94 if not stamp else 30)
    def issue(par, k):
        kk = k & 15
        r = RING + kk*4
        srd_, vo = ("s[16:19]", vKoff) if kk < 8 else ("s[20:23]", vVoff)
        so = 50 + (kk & 7)
        if par and k < 16: so = 4 + (kk & 7) - (NM - 8)
        a(f"buffer_load_dwordx4 v[{r}:{r+3}], v{vo}, {srd_}, s{so} offen{fp}")
    vS8 = vS + [128,129,130,131]
    def body(N):
        a(f"L_p0:")
        for i in range(16-N): a(f"s_mov_b32 s{4+i}, s{50+N-8+i}")
        a(f"s_add_u32 s{sTmp}, s{sTau}, 1"); a(f"s_add_u32 s70, s{sTau}, 2"); a(f"s_add_u32 s71, s{sTau}, 3")
        a(f"v_readlane_b32 s{sPack}, v{vPackL}, s{sTau}"); a(f"v_readlane_b32 s72, v{vPackL}, s{sTmp}")
        for j in range(4): a(f"v_readlane_b32 s{50+j}, v{vList[j]}, s70")
        for j in range(4): a(f"v_bfe_u32 v{vS8[j]}, s{sPack}, v{vSh[j]}, 4")
        for j in range(4): a(f"v_bfe_u32 v{vS8[4+j]}, s72, v{vSh[j]}, 4")
        if trace:
            a("s_memrealtime s[100:101]"); a("s_waitcnt lgkmcnt(0)"); a(f"s_mov_b32 m0, s{sTau}"); a(f"v_writelane_b32 v{vEff}, s100, m0")
        a(f"s_sub_u32 s69, s{sT}, s{sTau}")
        a(f"v_mov_b32 v{vX}, s69"); a(f"ds_write_b32 v{vQoff}, v{vX}")
        a(f"s_cmp_le_u32 s69, {tail}"); a("s_cselect_b64 vcc, -1, 0")
        a(f"s_add_u32 s{sTau}, s{sTau}, 2")
        for hh in range(2):
            for j in range(4): a(f"v_cmp_gt_u32 s[{sMask[j]}:{sMask[j]+1}], v{vS8[4*hh+j]}, v{vT[0]}")
            for j in range(4): a(f"v_cndmask_b32 v{vS8[4*hh+j]}, v{vNinf}, 0, s[{sMask[j]}:{sMask[j]+1}]")
            if hh == 0:
                for j in range(4): a(f"v_readlane_b32 s{54+j}, v{vList[j]}, s71")
        def wait_issue(k):
            a("s_cbranch_vccnz 1"); a(f"s_waitcnt vmcnt({NP-1})")
            a(f"s_waitcnt vmcnt({N-1})"); issue(1, k+N)
        def dpp(j):
            for i in range(4):
                a(f"v_fmac_f32_dpp v{vS8[j]}, v{vD[j%3]+i}, v{vScale} quad_perm:[{i},{i},{i},{i}] row_mask:0xf bank_mask:0xf")
        for j in range(8):
            r = RING + j*4
            wait_issue(j)
            a(f"v_mfma_f32_16x16x32_bf16 v[{vD[j%3]}:{vD[j%3]+3}], v[{r}:{r+3}], v[{vQ}:{vQ+3}], 0")
            if j == 2: a("s_nop 1")
            if j >= 2: dpp(j-2)
            if j == 5: a(f"v_max3_f32 v{vX}, v{vS8[0]}, v{vS8[1]}, v{vMx}")
            if j == 6: a(f"v_max3_f32 v{vX}, v{vX}, v{vS8[2]}, v{vS8[3]}")
            if j == 7: a(f"v_max3_f32 v{vX}, v{vX}, v{vS8[4]}, v{vS8[5]}")
        dpp(6); dpp(7)
        a(f"v_max3_f32 v{vX}, v{vX}, v{vS8[6]}, v{vS8[7]}")
        a(f"v_mov_b32 v{vY}, v{vX}"); a("s_nop 1")
        a(f"v_permlane16_swap_b32 v{vY}, v{vX}"); a(f"v_max_f32 v{vX}, v{vX}, v{vY}")
        a(f"v_mov_b32 v{vY}, v{vX}"); a("s_nop 1")
        a(f"v_permlane32_swap_b32 v{vY}, v{vX}"); a(f"v_max_f32 v{vX}, v{vX}, v{vY}")
        a(f"v_sub_f32 v{vAl}, v{vMx}, v{vX}")
        for j in range(8): a(f"v_sub_f32 v{vS8[j]}, v{vS8[j]}, v{vX}")
        a(f"v_exp_f32 v{vAl}, v{vAl}")
        for j in range(8): a(f"v_exp_f32 v{vS8[j]}, v{vS8[j]}")
        a(f"v_mov_b32 v{vMx}, v{vX}")
        pb = [vD[0]+j for j in range(8)]
        for j in range(2): a(f"v_cvt_pk_bf16_f32 v{pb[j]}, v{vS8[j]}, v{vS8[j]}")
        for i in range(8): a(f"v_mul_f32 v{vOa+i}, v{vAl}, v{vOa+i}")
        def ands(j):
            b = vP+2+4*(j&1)
            a(f"v_and_b32 v{b}, v{vM0}, v{pb[j]}"); a(f"v_and_b32 v{b+1}, v{vM1}, v{pb[j]}")
        ands(0); ands(1)
        for j in range(2,8): a(f"v_cvt_pk_bf16_f32 v{pb[j]}, v{vS8[j]}, v{vS8[j]}")
        a(f"v_fma_f32 v{vLs}, v{vLs}, v{vAl}, v{vS8[0]}")
        a(f"s_cmp_le_u32 s69, 1")
        for j in range(8):
            r = RING + (8+j)*4; b = vP+2+4*(j&1)
            if j == 4: a("s_cbranch_scc1 L_epi")
            wait_issue(8+j)
            a(f"v_mfma_f32_16x16x32_bf16 v[{vOa}:{vOa+3}], v[{r}:{r+3}], v[{b}:{b+3}], v[{vOa}:{vOa+3}]")
            a(f"v_mfma_f32_16x16x32_bf16 v[{vOb}:{vOb+3}], v[{r}:{r+3}], v[{b-2}:{b+1}], v[{vOb}:{vOb+3}]")
            if j < 6: ands(j+2)
            if j < 3: a(f"v_add_f32 v{vS8[2*j+1]}, v{vS8[2*j+1]}, v{vS8[2*j+2]}"); a(f"v_add_f32 v{vLs}, v{vLs}, v{vS8[2*j+1]}")
            if j == 3: a(f"v_add_f32 v{vLs}, v{vLs}, v{vS8[7]}")
    assert 12 <= NM <= 15 and NP <= 8
    a(f"s_cmp_eq_u32 s{sRole}, 0"); a(f"s_cselect_b32 s98, 0, s98")
    if noshared: a("s_mov_b32 s98, 0")
    a(f"s_lshr_b32 s3, s96, 2"); a(f"s_cmp_gt_u32 s3, s{sTmp}"); a("s_cselect_b32 s3, s98, 1")
    a("s_cmp_lg_u32 s3, 0"); a("s_cbranch_scc1 L_lst")
    for k in range(NP): issue(0, k)
    a("L_lst:")
    if ptrace: a("s_memrealtime s[100:101]"); a("s_waitcnt lgkmcnt(0)"); a("v_writelane_b32 v167, s100, 6")
    a(f"s_lshl_b32 s75, s{sH}, 9")
    a(f"s_lshl_b32 s{sOutA}, s{sA}, 13"); a(f"s_lshl_b32 s{sOutB}, s{sB}, 13")
    a(f"s_add_u32 s{sOutA}, s{sOutA}, s75"); a(f"s_add_u32 s{sOutB}, s{sOutB}, s75")
    a("s_cmp_lt_i32 s70, 1"); a(f"s_cselect_b32 s70, {OOB}, s{sOutA}")
    a("s_cmp_lt_i32 s71, 1"); a(f"s_cselect_b32 s71, {OOB}, s{sOutB}")
    a(f"v_mov_b32 v152, s71"); a(f"v_mov_b32 v153, s70")
    a(f"v_cndmask_b32 v152, v152, v153, s[66:67]")
    a(f"v_add_u32 v{vQoff}, v{vQoff}, v152")
    a(f"buffer_load_dwordx4 v[{vQ}:{vQ+3}], v{vQoff}, s[24:27], 0 offen")
    a(f"s_sub_u32 s95, s{sCB}, s93"); a(f"s_add_u32 s97, s95, 15"); a(f"s_lshr_b32 s97, s97, 4")
    a(f"s_add_u32 s{sT}, s96, s97")
    for j in range(4): a(f"v_cmp_gt_u32 s[{sMask[j]}:{sMask[j]+1}], s96, v{ee[j]}")
    a(f"s_sub_u32 s75, s{sB}, s{sA}"); a("s_lshl_b32 s97, s75, 7"); a(f"s_add_u32 s97, s97, s{sT}"); a("s_sub_u32 s97, s97, 1")
    for j in range(4): a(f"v_sub_u32 v{yy[j]}, s97, v{ee[j]}")
    a("s_lshl_b32 s75, s75, 11"); a("s_add_u32 s95, s95, s75")
    for j in range(4): a(f"v_cndmask_b32 v{yy[j]}, v{yy[j]}, v{ee[j]}, s[{sMask[j]}:{sMask[j]+1}]")
    a(f"s_lshl_b32 s93, s93, 12"); a("s_add_u32 s93, s93, s72")
    for j in range(4):
        a(f"v_lshl_add_u32 v{ad[j]}, v{yy[j]}, 2, s99")
        a(f"ds_read_b32 v{vList[j]}, v{ad[j]} offset:{BT}")
    a(f"v_mov_b32 v152, s92"); a(f"v_mov_b32 v153, s93"); a(f"v_mov_b32 v154, s94"); a(f"v_mov_b32 v155, s95")
    a(f"s_lshl_b32 s72, s{sTau}, 2"); a(f"s_sub_u32 s72, s{sT}, s72")
    for j in range(4): a(f"v_cndmask_b32 v{qo[j]}, v153, v152, s[{sMask[j]}:{sMask[j]+1}]")
    for j in range(4): a(f"v_cndmask_b32 v{rm[j]}, v155, v154, s[{sMask[j]}:{sMask[j]+1}]")
    for j in range(4): a(f"v_cndmask_b32 v{mu[j]}, 16, 1, s[{sMask[j]}:{sMask[j]+1}]")
    for j in range(4): a(f"v_cmp_gt_u32 s[{sMask[j]}:{sMask[j]+1}], s72, v{ee[j]}")
    a(f"s_add_u32 s{sT}, s72, 3"); a(f"s_lshr_b32 s{sT}, s{sT}, 2")
    a(f"v_mov_b32 v155, {OOB}")
    for j in range(4): a(f"v_mad_i32_i24 v{rm[j]}, v{yy[j]}, -16, v{rm[j]}")
    for j in range(4): a(f"v_cndmask_b32 v{mu[j]}, 0, v{mu[j]}, s[{sMask[j]}:{sMask[j]+1}]")
    a(f"s_add_u32 s{sTmp}, s{sTau}, 1")
    for j in range(4): a(f"v_med3_i32 v{rm[j]}, v{rm[j]}, 0, 4")
    a("s_waitcnt lgkmcnt(0)")
    for j in range(4): a(f"v_lshl_add_u32 v{vList[j]}, v{vList[j]}, 16, v{qo[j]}")
    for j in range(4): a(f"v_cndmask_b32 v{vList[j]}, v155, v{vList[j]}, s[{sMask[j]}:{sMask[j]+1}]")
    for j in range(4): a(f"v_mul_u32_u24 v{rm[j]}, v{rm[j]}, v{mu[j]}")
    for j in range(4): a(f"v_readlane_b32 s{sSet[0]+j}, v{vList[j]}, s{sTau}")
    for j in range(4): a(f"v_readlane_b32 s{sSet[1]+j}, v{vList[j]}, s{sTmp}")
    if RT == 3:
        a(f"s_add_u32 s{sTmp}, s{sTau}, 2")
        for j in range(4): a(f"v_readlane_b32 s{sSet[2]+j}, v{vList[j]}, s{sTmp}")
    a(f"v_lshl_or_b32 v{rm[0]}, v{rm[1]}, 8, v{rm[0]}"); a(f"v_lshl_or_b32 v{rm[2]}, v{rm[3]}, 8, v{rm[2]}")
    a(f"v_lshl_or_b32 v{vPackL}, v{rm[2]}, 16, v{rm[0]}")
    a("s_cmp_lg_u32 s98, 0"); a("s_cbranch_scc1 L_shwg")
    a("s_cmp_eq_u32 s3, 0"); a("s_cbranch_scc1 L_main")
    for k in range(NP): issue(0, k)
    a("L_main:")
    a(f"v_mov_b32 v{vQoff}, {SX+16}")
    e = [160,161,vCtx,162,163,164,165,166,vEff if not trace else 167]
    a(f"s_mul_i32 s70, s{sW}, {WSTR}"); a(f"s_add_u32 s70, s70, {OB}")
    a(f"v_lshl_add_u32 v{e[0]}, v0, 4, s70")
    a(f"s_lshl_b32 s71, s{sW}, 2"); a(f"s_add_u32 s71, s71, {MB}")
    a(f"v_bfe_u32 v{e[1]}, v0, 2, 2"); a(f"v_lshl_add_u32 v{e[1]}, v{e[1]}, 5, s71")
    a(f"s_lshl_b32 s72, s{sW}, 5"); a(f"s_add_u32 s72, s72, {MB}"); a(f"v_mov_b32 v{e[2]}, s72")
    a(f"s_lshl_b32 s72, s{sW}, 6"); a(f"s_add_u32 s72, s72, {OB}")
    a(f"v_lshl_add_u32 v{e[3]}, v{vT[0]}, 8, s72")
    a(f"v_and_b32 v{e[4]}, 1, v0"); a(f"v_lshl_add_u32 v{e[3]}, v{e[4]}, 5, v{e[3]}")
    a(f"v_bfe_u32 v{e[4]}, v0, 2, 2"); a(f"v_lshl_add_u32 v{e[3]}, v{e[4]}, 2, v{e[3]}")
    a(f"v_bfe_u32 v{e[4]}, v0, 1, 1"); a(f"v_mul_u32_u24 v{e[4]}, {ESTR}, v{e[4]}"); a(f"v_add_u32 v{e[3]}, v{e[3]}, v{e[4]}")
    for w in range(1,4): a(f"v_add_u32 v{e[3+w]}, {w*WSTR}, v{e[3]}")
    a(f"s_lshl_b32 s72, s{sW}, 8"); a(f"s_add_u32 s72, s72, {SH}")
    a(f"v_lshl_add_u32 v{e[7]}, v{vT[0]}, 6, s72")
    a(f"v_bfe_u32 v{e[8]}, v0, 1, 2"); a(f"v_lshl_add_u32 v{e[7]}, v{e[8]}, 4, v{e[7]}")
    a(f"v_bfe_u32 v{e[8]}, v0, 3, 1"); a(f"v_lshl_add_u32 v{e[7]}, v{e[8]}, 3, v{e[7]}")
    a(f"v_and_b32 v{e[8]}, 1, v0"); a(f"v_lshl_add_u32 v{e[7]}, v{e[8]}, 2, v{e[7]}")
    a(f"s_cmp_ge_u32 s{sW}, 2"); a(f"s_cselect_b32 s75, s{sOutB}, s{sOutA}")
    a(f"s_and_b32 s70, s{sW}, 1"); a("s_lshl_b32 s70, s70, 8"); a("s_add_u32 s75, s75, s70")
    a(f"v_lshlrev_b32 v{e[8]}, 2, v0")
    if onlyduty: a(f"s_mov_b32 s{sT}, 0")
    if dt:
        a(f"s_and_b32 s3, s{sH}, 3"); a("s_cmp_eq_u32 s3, 1"); a(f"s_cselect_b32 s3, {dt[1]}, {dt[0]}"); a(f"s_cselect_b32 s70, {dt[2]}, {tail}")
        a(f"s_cmp_eq_u32 s{sRole}, 0"); a(f"s_cselect_b32 s3, s70, s3")
    if xh:
        a("s_getreg_b32 s3, hwreg(HW_REG_XCC_ID, 0, 3)"); a(f"s_lshr_b32 s3, {xh[0]}, s3"); a("s_bitcmp1_b32 s3, 0"); a(f"s_cselect_b32 s3, {xh[1]}, {xh[2]}")
    a(f"s_cmp_ge_u32 s{sTau}, s{sT}"); a("s_cbranch_scc1 L_epi")
    for k in range(NP, NM):
        if not head: a(f"s_waitcnt vmcnt({NP-1})")
        issue(0, k)
    body(NM)
    a(f"s_cmp_ge_u32 s{sTau}, s{sT}"); a(f"s_cbranch_scc0 L_p0")
    a("L_epi:")
    st(96)
    a(f"v_mov_b32 v{vX}, 0"); a(f"ds_write_b32 v{vQoff}, v{vX}")
    a(f"v_mov_b32 v{vY}, v{vLs}"); a("s_nop 1")
    a(f"v_permlane16_swap_b32 v{vY}, v{vLs}"); a(f"v_add_f32 v{vLs}, v{vLs}, v{vY}")
    a(f"v_mov_b32 v{vY}, v{vLs}"); a("s_nop 1")
    a(f"v_permlane32_swap_b32 v{vY}, v{vLs}"); a(f"v_add_f32 v{vLs}, v{vLs}, v{vY}")
    a(f"ds_write2_b32 v{e[1]}, v{vMx}, v{vLs} offset0:0 offset1:32")
    a(f"ds_write_b128 v{e[0]}, v[{vOa}:{vOa+3}]")
    a(f"ds_write_b128 v{e[0]}, v[{vOb}:{vOb+3}] offset:{ESTR}")
    a("s_waitcnt vmcnt(0) lgkmcnt(0)")
    a("s_barrier")
    NPART = 4 + (0 if noshared else NSP)
    E = RING
    a(f"ds_read_b128 v[{E}:{E+3}], v{e[2]}"); a(f"ds_read_b128 v[{E+4}:{E+7}], v{e[2]} offset:16")
    a(f"ds_read_b128 v[{E+8}:{E+11}], v{e[2]} offset:128"); a(f"ds_read_b128 v[{E+12}:{E+15}], v{e[2]} offset:144")
    for w in range(4): a(f"ds_read2_b32 v[{E+16+2*w}:{E+17+2*w}], v{e[3+w]} offset0:0 offset1:4")
    for s in range(NPART-4): a(f"ds_read_b32 v{E+25+2*s}, v{e[7]} offset:{1024*s}")
    a(f"s_waitcnt lgkmcnt({NPART+2})")
    a(f"v_max3_f32 v{vX}, v{E}, v{E+1}, v{E+2}")
    i = 3
    while i < NPART:
        if i+1 < NPART: a(f"v_max3_f32 v{vX}, v{vX}, v{E+i}, v{E+i+1}"); i += 2
        else: a(f"v_max_f32 v{vX}, v{vX}, v{E+i}"); i += 1
    for w in range(NPART): a(f"v_sub_f32 v{E+w}, v{E+w}, v{vX}")
    for w in range(NPART): a(f"v_exp_f32 v{E+w}, v{E+w}")
    a(f"s_waitcnt lgkmcnt({NPART})")
    a(f"v_mul_f32 v{vX}, v{E}, v{E+8}")
    for w in range(1,NPART): a(f"v_fmac_f32 v{vX}, v{E+w}, v{E+8+w}")
    a(f"v_rcp_f32 v{vX}, v{vX}")
    a("s_waitcnt lgkmcnt(0)")
    for s in range(NPART-4): a(f"v_lshlrev_b32 v{E+24+2*s}, 16, v{E+25+2*s}"); a(f"v_and_b32 v{E+25+2*s}, 0xffff0000, v{E+25+2*s}")
    a(f"v_mul_f32 v{vY}, v{E}, v{E+16}"); a(f"v_mul_f32 v{vAl}, v{E}, v{E+17}")
    for w in range(1,NPART):
        a(f"v_fmac_f32 v{vY}, v{E+w}, v{E+16+2*w}"); a(f"v_fmac_f32 v{vAl}, v{E+w}, v{E+17+2*w}")
    a(f"v_mul_f32 v{vY}, v{vY}, v{vX}"); a(f"v_mul_f32 v{vAl}, v{vAl}, v{vX}")
    a(f"v_cvt_pk_bf16_f32 v{vY}, v{vY}, v{vAl}")
    a(f"buffer_store_dword v{vY}, v{e[8]}, s[36:39], s75 offen")
    a("s_branch L_fin")

    a("L_coll:")
    a("s_waitcnt vmcnt(0) lgkmcnt(0)")
    a("s_barrier")
    a(f"ds_read_b128 v[{t[4]}:{t[7]}], v{vSx}")
    a(f"s_lshr_b32 s{sS}, s{sS}, 6")
    a("s_waitcnt lgkmcnt(0)")
    a(f"v_min3_u32 v{t[4]}, v{t[4]}, v{t[5]}, v{t[6]}"); a(f"v_min3_u32 v{t[4]}, v{t[4]}, v{t[7]}, s{sS}")
    a("v_lshlrev_b32 v1, 4, v0")
    a(f"v_readfirstlane_b32 s{sS}, v{t[4]}")
    a("v_and_b32 v4, 3, v0"); a("v_lshlrev_b32 v4, 5, v4"); a("v_lshrrev_b32 v5, 2, v0"); a("v_lshl_add_u32 v4, v5, 2, v4")
    a(f"v_add_u32 v4, {MB+16}, v4")
    a(f"s_lshr_b32 s{sS}, s{sS}, {LG}"); a(f"s_lshl_b32 s98, s{sS}, 1")
    st(30)
    if tpf:
        a(f"s_add_u32 s96, s{sCA}, 15"); a("s_lshr_b32 s96, s96, 4"); a(f"s_add_u32 s97, s{sCB}, 15"); a("s_lshr_b32 s97, s97, 4")
        a(f"s_add_u32 s{sT}, s96, s97")
        for j in range(4): a(f"v_cmp_gt_u32 s[{sMask[j]}:{sMask[j]+1}], s96, v{ee[j]}")
        a(f"s_sub_u32 s75, s{sB}, s{sA}"); a("s_lshl_b32 s97, s75, 7"); a(f"s_add_u32 s97, s97, s{sT}"); a("s_sub_u32 s97, s97, 1")
        for j in range(4): a(f"v_sub_u32 v{yy[j]}, s97, v{ee[j]}")
        a(f"s_lshl_b32 s99, s{sA}, 9")
        for j in range(4): a(f"v_cndmask_b32 v{yy[j]}, v{yy[j]}, v{ee[j]}, s[{sMask[j]}:{sMask[j]+1}]")
        for j in range(4):
            a(f"v_lshl_add_u32 v{ad[j]}, v{yy[j]}, 2, s99"); a(f"ds_read_b32 v{qo[j]}, v{ad[j]} offset:{BT}")
        a(f"s_lshl_b32 s{sTau}, s{sS}, {LG}"); a(f"s_lshl_b32 s72, s{sTau}, 2"); a(f"s_sub_u32 s72, s{sT}, s72")
        a(f"s_lshr_b32 s{sT}, s72, 2")
        a(f"s_lshl_b32 s72, s{sH}, 8"); a(f"s_add_u32 s52, s{sTau}, 2")
        a("s_waitcnt lgkmcnt(0)")
        for j in range(4): a(f"v_lshl_add_u32 v{qo[j]}, v{qo[j]}, 16, s72")
    def controller():
        a(f"v_mov_b32 v2, {SX+16}")
        for c,(R,rules) in enumerate(ctl):
            a(f"L_k{c}:"); a(f"s_sleep {csleep}"); a("ds_read_b32 v3, v2"); a("s_waitcnt lgkmcnt(0)"); a("v_readfirstlane_b32 s71, v3")
            a(f"s_cmp_gt_u32 s71, {R}"); a(f"s_cbranch_scc1 L_k{c}")
            a(f"s_cmp_le_u32 s71, 1"); a("s_cbranch_scc1 L_kend")
            a("s_mov_b64 exec, 1"); a("v_mov_b32 v3, 1")
            a(f"buffer_atomic_add v3, off, s[84:87], 0 offset:{128+4*c} sc0")
            a("s_waitcnt vmcnt(0)"); a("v_readfirstlane_b32 s71, v3")
            code = {"L":0x200, "M":0, "H":0x100, "X":0x300}
            for i,(th,lv,tl) in enumerate(rules):
                if i == 0: a(f"s_mov_b32 s72, {code[lv]|tl}")
                else: a(f"s_cmp_ge_u32 s71, {th}"); a(f"s_cselect_b32 s72, {code[lv]|tl}, s72")
            a("v_mov_b32 v3, s72"); a("ds_write_b32 v2, v3 offset:4")
            a("s_mov_b64 exec, -1")
        if hsw is not None:
            a(f"L_hs:"); a(f"s_sleep {csleep}"); a("ds_read_b32 v3, v2"); a("s_waitcnt lgkmcnt(0)"); a("v_readfirstlane_b32 s71, v3")
            a(f"s_cmp_gt_u32 s71, {hsw}"); a(f"s_cbranch_scc1 L_hs")
            a(f"v_mov_b32 v3, {tail}"); a("ds_write_b32 v2, v3 offset:4")
        a("L_kend:")
        if fb is not None:
            thH, thL, bias, tlH, tlL, fsl = fb["H"], fb["L"], fb["bias"], fb.get("tH", tail), fb.get("tL", tail), fb.get("sleep", 16)
            every = fb.get("every", 1)
            a(f"s_sub_u32 s60, s{sP}, 3"); a(f"s_cmp_eq_u32 s60, s{sH}"); a("s_cselect_b32 s60, -1, 0")
            a(f"s_cmp_lt_u32 s{sH}, 8"); a("s_cselect_b32 s60, s60, 0")
            a(f"s_lshl_b32 s61, s{sH}, 2")
            a("s_mov_b64 exec, 1")
            a("L_fb:")
            a(f"s_sleep {fsl}")
            a("buffer_load_dwordx4 v[12:15], off, s[84:87], 0 offset:128 sc1")
            a("buffer_load_dwordx4 v[16:19], off, s[84:87], 0 offset:144 sc1")
            a("ds_read_b32 v3, v2"); a("s_waitcnt lgkmcnt(0)"); a("v_readfirstlane_b32 s71, v3")
            a("s_add_u32 s62, s71, 1")
            a("s_cmp_eq_u32 s60, 0"); a("s_cbranch_scc1 L_fb1")
            a("s_cmp_ge_u32 s62, s60"); a("s_cbranch_scc1 L_fb1")
            a("s_cmp_gt_u32 s62, 0x1000"); a("s_cbranch_scc1 L_fb1")
            a(f"s_sub_u32 s60, s62, {every-1}"); a("s_max_i32 s60, s60, 1"); a("v_mov_b32 v10, s62")
            if not fb.get("now"): a("buffer_store_dword v10, off, s[84:87], s61 offset:128 sc1")
            a("L_fb1:")
            a("s_waitcnt vmcnt(0)")
            a("v_add3_u32 v20, v12, v13, v14"); a("v_min3_u32 v21, v12, v13, v14")
            a("v_add3_u32 v20, v20, v15, v16"); a("v_min3_u32 v21, v21, v15, v16")
            a("v_add3_u32 v20, v20, v17, v18"); a("v_min3_u32 v21, v21, v17, v18")
            a("v_add_u32 v20, v20, v19"); a("v_min_u32 v21, v21, v19")
            a("s_lshl_b32 s62, s62, 3"); a(f"s_add_u32 s62, s62, {bias}")
            a("v_readfirstlane_b32 s63, v20"); a("v_readfirstlane_b32 s64, v21")
            a("s_sub_u32 s62, s62, s63")
            a(f"s_cmp_ge_i32 s62, {thH}"); a(f"s_cselect_b32 s65, {0x100|tlH}, {tail}")
            a(f"s_cmp_le_i32 s62, {-thL}"); a(f"s_cselect_b32 s65, {0x200|tlL}, s65")
            if "X" in fb: a(f"s_cmp_ge_i32 s62, {fb['X']}"); a(f"s_cselect_b32 s65, {0x300}, s65")
            a("s_cmp_eq_u32 s64, 0"); a(f"s_cselect_b32 s65, {tail}, s65")
            a("s_cmp_gt_u32 s71, 0x1000"); a(f"s_cselect_b32 s65, {tail}, s65")
            a("v_mov_b32 v3, s65"); a("ds_write_b32 v2, v3 offset:4")
            a(f"s_cmp_gt_u32 s71, {wake}"); a("s_cbranch_scc1 L_fb")
            a("s_mov_b64 exec, -1")
    if noshared: controller()
    if not noshared:
        a("s_cmp_eq_u32 s98, 0"); a("s_cbranch_scc1 L_c2")
        a(f"s_cmp_eq_u32 s{sRole}, 0"); a("s_cbranch_scc1 L_c2")
        lK = [8,9,10,11]; lV = [12,13,14,15]; lL = 16
        a(f"s_mul_i32 s71, s98, s{sP}"); a("s_lshl_b32 s71, s71, 3")
        a(f"v_lshl_add_u32 v20, v0, 3, s71")
        a(f"ds_read_b64 v[{lL}:{lL+1}], v20 offset:{BT}")
        a("v_and_b32 v21, 15, v0"); a("v_lshrrev_b32 v22, 4, v0")
        for q in range(4):
            a(f"v_add_u32 v23, {4*q}, v22")
            a(f"v_lshlrev_b32 v25, 12, v23")
            if q: a(f"v_subrev_u32 v25, {1024*q}, v25")
            a(f"v_xor_b32 v24, v23, v21"); a(f"v_lshl_add_u32 v{lK[q]}, v24, 4, v25")
            a(f"v_and_b32 v24, 7, v23"); a("v_lshlrev_b32 v24, 1, v24"); a("v_xor_b32 v24, v24, v21"); a(f"v_lshl_add_u32 v{lV[q]}, v24, 4, v25")
        a(f"s_lshl_b32 s70, s{sH}, 8")
        a("s_waitcnt lgkmcnt(0)")
        a(f"v_lshl_add_u32 v{lL}, v{lL}, 16, s70"); a(f"v_lshl_add_u32 v{lL+1}, v{lL+1}, 16, s70")
        a("s_mov_b32 s72, 0")
        a("s_mov_b32 s99, 0")
        def lstage():
            a(f"v_readlane_b32 s50, v{lL}, s72"); a(f"v_readlane_b32 s51, v{lL+1}, s72")
            a("s_and_b32 s75, s72, 3"); a("s_lshl_b32 s75, s75, 14"); a("s_add_u32 s72, s72, 1")
            for b in range(2):
                for (srd_, vo, off) in (("s[16:19]", lK, 0), ("s[20:23]", lV, 8192)):
                    a(f"s_add_u32 m0, s75, {off+4096*b}"); a("s_nop 0")
                    for q in range(4): a(f"buffer_load_dwordx4 v{vo[q]}, {srd_}, s{50+b} offen offset:{1024*q}{fs} lds")
        a("L_lp:")
        lstage()
        a(f"s_min_u32 s71, s98, {DS}"); a("s_cmp_lt_u32 s72, s71"); a("s_cbranch_scc1 L_lp")
        a("L_ll:")
        a("s_sub_u32 s71, s72, s99")
        for dd in range(DS, 1, -1):
            a(f"s_cmp_eq_u32 s71, {dd}"); a(f"s_cbranch_scc1 L_lw{dd}")
        a("s_waitcnt vmcnt(0)")
        for dd in range(2, DS+1):
            a(f"L_lw{dd}:"); a(f"s_waitcnt vmcnt({16*(dd-1)})")
        a("s_barrier")
        a("s_add_u32 s99, s99, 1")
        a("s_cmp_ge_u32 s72, s98"); a("s_cbranch_scc1 L_ln")
        lstage()
        a("L_ln:")
        a("s_cmp_lt_u32 s99, s98"); a("s_cbranch_scc1 L_ll")
        a(f"s_mul_i32 s70, s{sH}, {NSP}"); a(f"s_add_u32 s70, s70, s{sP}")
        a(f"s_lshl_b32 s71, s70, 14")
        a(f"v_mul_u32_u24 v23, {RSTR-256}, v22"); a("v_add_u32 v23, v23, v1")
        a("v_lshlrev_b32 v24, 3, v0")
        a(f"v_add_u32 v25, {MLST}, v24")
        a("s_barrier"); a("s_barrier")
        if nostore: a("s_branch L_c2")
        a(f"ds_read_b64 v[26:27], v25")
        for w in range(2):
            for dt in range(8): a(f"ds_read_b128 v[{64+32*w+4*dt}:{67+32*w+4*dt}], v23 offset:{STG+4*RSTR*(8*w+dt)}")
            for dt in range(8):
                a(f"s_waitcnt lgkmcnt({7-dt})")
                a(f"buffer_store_dwordx4 v[{64+32*w+4*dt}:{67+32*w+4*dt}], v1, s[88:91], s71 offen offset:{1024*(dt&3)}{sfl}")
                if dt&3 == 3: a("s_add_u32 s71, s71, 4096")
                if sgap: a(f"s_waitcnt vmcnt({sgap-1})")
        a(f"s_lshl_b32 s72, s70, 9"); a(f"s_add_u32 s72, s72, {WSML}")
        a(f"buffer_store_dwordx2 v[26:27], v24, s[88:91], s72 offen{sfl}")
        a("s_lshl_b32 s70, s70, 2"); a("v_mov_b32 v2, 1")
        a("s_waitcnt vmcnt(0)")
        if wbl: a("buffer_wbl2 sc1"); a("s_waitcnt vmcnt(0)")
        a("s_mov_b64 exec, 1")
        a("buffer_store_dword v2, off, s[84:87], s70 sc1")
        a("s_mov_b64 exec, -1")
        if stamp: a("s_memrealtime s[100:101]")
        a("L_c2:")
        controller()
        if not nocoll: a("s_cmp_lg_u32 s98, 0"); a("s_cbranch_scc1 L_c1")
        for i in range(4*NSP): a(f"v_mov_b32 v{64+i}, 0")
        a("v_mov_b32 v8, 0xf149f2ca"); a("v_mov_b32 v9, 0")
        a(f"v_cmp_gt_u32 vcc, {4*NSP}, v0"); a("s_and_saveexec_b64 s[60:61], vcc")
        a("s_branch L_c3")
        a("L_c1:")
        a("L_c4:")
        if tpoll is not None: a(f"s_sleep {tsleep}"); a(f"buffer_load_dword v10, off, s[84:87], 0 offset:192{tpoll}"); a("s_waitcnt vmcnt(0)")
        else: a("s_sleep 8")
        a("ds_read_b32 v3, v2"); a("s_waitcnt lgkmcnt(0)"); a("v_readfirstlane_b32 s71, v3")
        if tpf:
            a(f"s_sub_u32 s53, s{sT}, s71"); a(f"s_max_i32 s53, s53, s{sTau}"); a(f"s_add_u32 s53, s53, {tpf}"); a(f"s_min_u32 s53, s53, s{sT}")
            a("s_cmp_ge_u32 s52, s53"); a("s_cbranch_scc1 L_c5")
            a("s_lshl_b64 exec, 1, s52"); a("s_add_u32 s52, s52, 1")
            for j in range(4):
                a(f"buffer_load_dword v{152+j}, v{qo[j]}, s[16:19], 0 offen{tpfl}"); a(f"buffer_load_dword v{156+j}, v{qo[j]}, s[20:23], 0 offen{tpfl}")
            a("s_mov_b64 exec, -1")
            a("L_c5:")
        a(f"s_cmp_gt_u32 s71, {wake}"); a("s_cbranch_scc1 L_c4")
        a(f"s_mul_i32 s70, s{sH}, {4*NSP}")
        if nopoll: a("s_branch L_ready")
        a("L_poll:")
        ld = {1:"dword v64", 2:"dwordx2 v[64:65]", 4:"dwordx4 v[64:67]"}[NSP]
        a(f"buffer_load_{ld}, off, s[84:87], s70 sc1")
        a("s_waitcnt vmcnt(0)")
        for s in range(1,NSP): a(f"v_and_b32 v64, v64, v{64+s}")
        a("s_nop 0"); a("v_readfirstlane_b32 s71, v64")
        a("s_cmp_lg_u32 s71, 0"); a("s_cbranch_scc1 L_ready")
        a(f"s_sleep {sleep}"); a("s_branch L_poll")
        a("L_ready:")
        if inv: a("buffer_inv sc1"); a("s_waitcnt vmcnt(0)")
        a(f"s_mul_i32 s70, s{sH}, {NSP*16384}")
        a(f"v_mov_b32 v2, s{sB}"); a(f"v_mov_b32 v3, s{sA}"); a("v_cmp_gt_u32 vcc, 32, v0")
        a("v_and_b32 v6, 31, v0"); a("v_lshlrev_b32 v6, 4, v6")
        a("v_cndmask_b32 v7, v2, v3, vcc"); a("v_lshl_add_u32 v7, v7, 9, v6")
        for s in range(NSP):
            if not noO: a(f"buffer_load_dwordx4 v[{64+4*s}:{67+4*s}], v7, s[88:91], s70 offen{cfl}")
            if s+1 < NSP: a("s_add_u32 s70, s70, 16384")
        a("v_and_b32 v6, 2, v0"); a("v_cmp_eq_u32 vcc, 0, v6")
        a("v_and_b32 v6, 1, v0"); a("s_nop 0")
        a("v_cndmask_b32 v2, v2, v3, vcc")
        a("v_lshl_add_u32 v2, v2, 1, v6"); a("v_lshl_add_u32 v2, v5, 6, v2"); a("v_lshlrev_b32 v2, 3, v2")
        a(f"s_mul_i32 s70, s{sH}, {NSP*512}"); a(f"s_add_u32 s70, s70, {WSML}")
        a(f"v_cmp_gt_u32 vcc, {4*NSP}, v0"); a("s_and_saveexec_b64 s[60:61], vcc")
        if not noml: a(f"buffer_load_dwordx2 v[8:9], v2, s[88:91], s70 offen{cfl}")
        a("s_waitcnt vmcnt(0)")
        a("L_c3:")
        a("ds_write2_b32 v4, v8, v9 offset0:0 offset1:32")
        a("s_mov_b64 exec, s[60:61]")
        for s in range(NSP): a(f"ds_write_b128 v1, v[{64+4*s}:{67+4*s}] offset:{SH+1024*s}")
    st(96)
    a("s_waitcnt lgkmcnt(0)")
    a("s_barrier")
    a("s_branch L_fin")

    a("L_shwg:")
    wKa = [26,27,28,29]; wVa = [30+i for i in range(8)]
    wMx,wLs,wAl,wX,wY = 40,41,42,43,39
    wQ = 44; wP = 60; wO = 96; wF = 128; wD = 160; u = [128+i for i in range(10)]
    sTs = 98; sTa = 99
    a(f"v_and_b32 v{u[0]}, 15, v0")
    g_ = vT[0]
    a(f"s_lshl_b32 s70, s{sW}, 3")
    a(f"v_lshrrev_b32 v{u[2]}, 1, v{u[0]}"); a(f"v_add_u32 v{u[2]}, s70, v{u[2]}")
    a(f"v_lshlrev_b32 v{u[3]}, 2, v{u[2]}")
    a(f"ds_bpermute_b32 v{u[3]}, v{u[3]}, v{vCtx}")
    a(f"v_and_b32 v{u[4]}, 1, v0"); a(f"v_lshlrev_b32 v{u[4]}, 8, v{u[4]}")
    a(f"v_lshl_add_u32 v{u[4]}, v{g_}, 4, v{u[4]}"); a(f"v_lshl_add_u32 v{u[4]}, v{u[2]}, 13, v{u[4]}")
    a(f"v_mov_b32 v{u[5]}, {OOB}")
    a(f"s_lshl_b32 s71, s{sH}, 9")
    a("s_waitcnt lgkmcnt(0)")
    a(f"v_cmp_gt_i32 vcc, 1, v{u[3]}")
    a(f"v_xor_b32 v{u[6]}, v{g_}, v{u[0]}"); a(f"v_lshlrev_b32 v{u[6]}, 4, v{u[6]}")
    a(f"v_cndmask_b32 v{u[4]}, v{u[4]}, v{u[5]}, vcc")
    for k in range(4): a(f"buffer_load_dwordx4 v[{wQ+4*k}:{wQ+4*k+3}], v{u[4]}, s[24:27], s71 offen offset:{64*k}")
    a(f"v_lshl_add_u32 v{wKa[0]}, v{u[0]}, 8, v{u[6]}")
    for k in range(1,4): a(f"v_xor_b32 v{wKa[k]}, {64*k}, v{wKa[0]}")
    a(f"v_bfe_u32 v{u[6]}, v0, 2, 2"); a(f"v_lshl_add_u32 v{u[6]}, v{g_}, 2, v{u[6]}")
    a(f"v_and_b32 v{u[7]}, 7, v{u[6]}"); a(f"v_lshlrev_b32 v{u[7]}, 5, v{u[7]}")
    a(f"v_lshl_add_u32 v{u[7]}, v{u[6]}, 8, v{u[7]}")
    a(f"v_and_b32 v{u[6]}, 3, v0"); a(f"v_lshl_add_u32 v{wVa[0]}, v{u[6]}, 3, v{u[7]}")
    for k in range(1,8): a(f"v_xor_b32 v{wVa[k]}, {32*k}, v{wVa[0]}")
    for i in range(32): a(f"v_mov_b32 v{wO+i}, 0")
    a(f"v_mov_b32 v{wMx}, 0xf149f2ca"); a(f"v_mov_b32 v{wLs}, 0")
    a(f"s_mov_b32 s92, 0x{SC:08x}")
    a(f"s_mov_b32 s{sTa}, 0")
    a(f"s_sub_u32 s93, s{sTs}, {pre}"); a("s_cselect_b32 s93, 0, s93")
    a("s_waitcnt vmcnt(0)")
    fq = lambda k,b: wF+8*k+4*b
    for sl in range(4):
        base = sl*16384
        a(f"L_sh{sl}:")
        a(f"s_cmp_eq_u32 s{sTa}, s93")
        a("s_barrier")
        for k in range(4):
            for b in range(2):
                a(f"ds_read_b128 v[{fq(k,b)}:{fq(k,b)+3}], v{wKa[k]} offset:{base+4096*b}")
        a(f"s_cbranch_scc1 L_shx{sl}")
        a(f"L_shy{sl}:")
        a(f"s_add_u32 s{sTa}, s{sTa}, 1")
        for k in range(4):
            a(f"s_waitcnt lgkmcnt({6-2*k+4*k})")
            for b in range(2):
                c = "0" if k == 0 else f"v[{wD+4*b}:{wD+4*b+3}]"
                a(f"v_mfma_f32_16x16x32_bf16 v[{wD+4*b}:{wD+4*b+3}], v[{fq(k,b)}:{fq(k,b)+3}], v[{wQ+4*k}:{wQ+4*k+3}], {c}")
            for b in range(2):
                dt = 2*k+b
                for bb in range(2):
                    r = fq(k,b)+2*bb
                    a(f"ds_read_b64_tr_b16 v[{r}:{r+1}], v{wVa[dt]} offset:{base+8192+4096*bb}")
        a("s_nop 2")
        a(f"v_max3_f32 v{wX}, v{wD}, v{wD+1}, v{wD+2}")
        a(f"v_max3_f32 v{wX}, v{wX}, v{wD+3}, v{wD+4}")
        a(f"v_max3_f32 v{wY}, v{wD+5}, v{wD+6}, v{wD+7}"); a(f"v_max_f32 v{wX}, v{wX}, v{wY}")
        a(f"v_mov_b32 v{wY}, v{wX}"); a("s_nop 1")
        a(f"v_permlane16_swap_b32 v{wY}, v{wX}"); a(f"v_max_f32 v{wX}, v{wX}, v{wY}")
        a(f"v_mov_b32 v{wY}, v{wX}"); a("s_nop 1")
        a(f"v_permlane32_swap_b32 v{wY}, v{wX}"); a(f"v_max_f32 v{wX}, v{wX}, v{wY}")
        a(f"v_mul_f32 v{wX}, s92, v{wX}"); a(f"v_max_f32 v{wX}, v{wX}, v{wMx}")
        a(f"v_sub_f32 v{wAl}, v{wMx}, v{wX}")
        for i in range(8): a(f"v_fma_f32 v{wD+i}, v{wD+i}, s92, -v{wX}")
        a(f"v_exp_f32 v{wAl}, v{wAl}")
        for i in range(8): a(f"v_exp_f32 v{wD+i}, v{wD+i}")
        a(f"v_mov_b32 v{wMx}, v{wX}")
        for i in range(4): a(f"v_cvt_pk_bf16_f32 v{wP+i}, v{wD+2*i}, v{wD+2*i+1}")
        def omul(dt):
            for i in range(4): a(f"v_mul_f32 v{wO+4*dt+i}, v{wAl}, v{wO+4*dt+i}")
        omul(0); omul(1)
        a(f"v_fma_f32 v{wLs}, v{wLs}, v{wAl}, v{wD}")
        a("s_waitcnt lgkmcnt(0)")
        for dt in range(8):
            r = fq(dt>>1, dt&1)
            a(f"v_mfma_f32_16x16x32_bf16 v[{wO+4*dt}:{wO+4*dt+3}], v[{r}:{r+3}], v[{wP}:{wP+3}], v[{wO+4*dt}:{wO+4*dt+3}]")
            if dt+2 < 8: omul(dt+2)
            if dt < 7: a(f"v_add_f32 v{wLs}, v{wLs}, v{wD+dt+1}")
        a(f"s_cmp_ge_u32 s{sTa}, s{sTs}")
        if sl < 3: a("s_cbranch_scc1 L_shout")
        else: a("s_cbranch_scc0 L_sh0")
    a("L_shout:")
    a("s_barrier")
    a(f"v_mov_b32 v{wY}, v{wLs}")
    a(f"s_mul_i32 s72, s{sW}, {16*RSTR}"); a(f"s_add_u32 s72, s72, {STG}")
    a(f"v_and_b32 v{wD+2}, 15, v0"); a(f"v_lshl_add_u32 v{wD+1}, v{g_}, 4, s72"); a(f"v_mul_u32_u24 v{wD+2}, {RSTR}, v{wD+2}"); a(f"v_add_u32 v{wD+1}, v{wD+1}, v{wD+2}")
    a(f"v_permlane16_swap_b32 v{wY}, v{wLs}"); a(f"v_add_f32 v{wLs}, v{wLs}, v{wY}")
    a(f"v_mov_b32 v{wY}, v{wLs}")
    a(f"v_and_b32 v{wD}, 15, v0")
    a(f"s_lshl_b32 s72, s{sW}, 7"); a(f"s_add_u32 s72, s72, {MLST}")
    a(f"v_permlane32_swap_b32 v{wY}, v{wLs}"); a(f"v_add_f32 v{wLs}, v{wLs}, v{wY}")
    a(f"v_lshl_add_u32 v{wD}, v{wD}, 3, s72")
    for k in range(4):
        for i in range(4): a(f"v_cvt_pk_bf16_f32 v{wF+4*k+i}, v{wO+8*k+2*i}, v{wO+8*k+2*i+1}")
        a(f"ds_write_b128 v{wD+1}, v[{wF+4*k}:{wF+4*k+3}] offset:{64*k}")
    a(f"ds_write_b64 v{wD}, v[{wMx}:{wMx+1}]")
    for i in range(8): a(f"v_mov_b32 v{vOa+i}, 0")
    a(f"v_mov_b32 v{vMx}, 0xf149f2ca"); a(f"v_mov_b32 v{vLs}, 0")
    for j in range(3): a(f"v_mov_b32 v{vP+4*j}, 0"); a(f"v_mov_b32 v{vP+4*j+1}, 0")
    a("s_waitcnt lgkmcnt(0)")
    a("s_barrier")
    if stamp: a("s_memrealtime s[100:101]")
    a("s_branch L_main")
    for sl in range(4):
        a(f"L_shx{sl}:")
        for k in range(NP): issue(0, k)
        a(f"s_branch L_shy{sl}")
    a("L_fin:")
    if ptrace: vEff = 167
    if trace or ptrace:
        a("s_mov_b64 exec, -1")
        a(f"s_mul_i32 s70, s2, 5"); a(f"s_add_u32 s70, s70, s{sW}"); a("s_lshl_b32 s70, s70, 8"); a(f"s_add_u32 s70, s70, {1<<23}")
        a("v_lshl_add_u32 v14, v0, 2, s70")
        a(f"global_store_dword v14, v{vEff}, s[78:79]")
    if stamp:
        a("s_mov_b64 exec, 1")
        a("s_memrealtime s[98:99]"); a("s_waitcnt lgkmcnt(0)")
        a(f"s_mul_i32 s70, s2, 5"); a(f"s_add_u32 s70, s70, s{sW}"); a("s_lshl_b32 s70, s70, 5"); a(f"s_add_u32 s70, s70, {1<<22}")
        a("s_getreg_b32 s83, hwreg(HW_REG_XCC_ID)")
        a(f"s_cmp_ge_u32 s{sW}, 4"); a(f"s_cselect_b32 s71, 1, 0"); a(f"s_lshl_b32 s72, s{sRole}, 1"); a("s_add_u32 s71, s71, s72"); a("s_add_u32 s71, s71, 0x7700")
        a("v_mov_b32 v18, s100"); a("v_mov_b32 v19, s2")
        a("v_mov_b32 v10, s82"); a("v_mov_b32 v11, s30"); a("v_mov_b32 v12, s96"); a("v_mov_b32 v13, s98")
        a("v_mov_b32 v14, s70"); a("v_mov_b32 v16, s83"); a(f"v_mov_b32 v17, s71")
        a("global_store_dwordx4 v14, v[10:13], s[78:79]")
        a("global_store_dwordx4 v14, v[16:19], s[78:79] offset:16")
    if calib:
        a("L_cal:"); a("s_memrealtime s[98:99]"); a("s_waitcnt lgkmcnt(0)"); a("s_sub_u32 s98, s98, s82")
        a(f"s_cmp_lt_u32 s98, {calib}"); a("s_cbranch_scc1 L_cal")
    a("L_end:"); a("s_endpgm")
    hdr = open("ref_stub.s").read()
    top = hdr[:hdr.index("; @launch")]
    out = top + f"; @launch grid=({NWG},1,1) block=(320,1,1) lds={LDSZ}\n"
    out += f""".amdgcn_target "amdgcn-amd-amdhsa--gfx950"
.text
.globl {KNAME}
.p2align 8
.type {KNAME},@function
{KNAME}:
""" + "\n".join(("" if x.endswith(":") else "    ")+x for x in L) + f"""
.section .rodata,"a"
.p2align 6
.amdhsa_kernel {KNAME}
  .amdhsa_next_free_vgpr 168
  .amdhsa_next_free_sgpr 102
  .amdhsa_accum_offset 168
  .amdhsa_group_segment_fixed_size 0
  .amdhsa_kernarg_size 64
  .amdhsa_user_sgpr_count 2
  .amdhsa_user_sgpr_kernarg_segment_ptr 1
  .amdhsa_system_sgpr_workgroup_id_x 1
.end_amdhsa_kernel
"""
    return out
if __name__ == "__main__":
    kw = eval("dict(%s)" % (sys.argv[2] if len(sys.argv) > 2 else ""))
    open(sys.argv[1], "w").write(gen(**kw))
```

```python
import sys, math, struct
KNAME = "standalone__paged_block_table_kv_radixattention__sampling_kernel"
KVBYTES = 138412032
OOB = 0x40000000
def f2u(x): return struct.unpack('<I', struct.pack('<f', x))[0]
SC = f2u(math.log2(math.e)/math.sqrt(128.0))

def gen(NP=5, NM=14, tail=5, head=0, NLO=4, NHI=6, ctl=(), csleep=8, xmask=0, iso=0, tpf=0, tpfl='', dt=None, order=1, cpf=1, xh=None, perm=0, hsw=None, fb=None, tpoll=None, tsleep=32, prot=0, hcls=None, hlev='H', htail=None, tailh=0, wbl=0, inv=0, cfl=' sc1', noml=0, noO=0, dlev='M', dtail=None, nst=4, samedst=0, sfl=' sc1', sgap=0, nopoll=0, nocoll=0, nostore=0, hrot=2, NSP=2, fp=" nt", fs=" nt", hmap=0, stamp=False, noshared=False, calib=0, sleep=32, prio=1, wake=2, onlyduty=False, DS=3, pre=2, trace=False, ptrace=False):
    L = []; a = L.append
    usemode = bool(ctl) or fb is not None or dlev != 'M' or dtail is not None or hcls is not None
    NWG = 256
    sW, sH, sP, sA, sB, sCA, sCB, sS, sT, sTau = 40,41,42,43,44,45,46,47,48,49
    RT = 2 if NM <= 15 else 3; sSet = [50, 54, 4]; sPack = 58; sRole = 59; sMask = [60,62,64,66]; sTmp = 68
    sOutA, sOutB = 73, 74
    vKoff, vVoff, vM0, vM1, vShift, vScale, vNinf = 1,2,3,4,5,6,7
    vT = [8,9,10,11]; vList = [12,13,14,15]; vPackL = 16; vMode = 17
    vQ = 18; vOa = 22; vOb = 26; vMx, vLs, vAl, vX, vY = 30,31,32,33,34
    vS = [35,36,37,38]; vQoff = 39
    vD = [40,44,48]; vP = 52; vCtx = 62; vEff = 63
    RING = 64
    t = [64+i for i in range(40)]
    BT = 49152; SX = 65536; MLST = SX+64; LDSZ = MLST+512
    OB = 0; ESTR = 1088; WSTR = 2*ESTR; SH = OB+4*WSTR; MB = SH+NSP*1024; STG = 16384; RSTR = 272
    WSO = 0; WSML = 16*NSP*16*1024; WSZ = WSML + 16*NSP*64*8
    LG = NSP.bit_length()-1
    def srd(d, p, n):
        a(f"s_mov_b32 s{d}, s{p}"); a(f"s_mov_b32 s{d+1}, s{p+1}")
        a(f"s_mov_b32 s{d+2}, {n}"); a(f"s_mov_b32 s{d+3}, 0x20000")
    def st(n):
        if stamp: a(f"s_memrealtime s[{n}:{n+1}]")

    a(f"s_cmp_ge_u32 s2, {NWG}"); a("s_cbranch_scc1 L_end")
    if xmask: a("s_and_b32 s3, s2, 7"); a(f"s_lshr_b32 s3, {xmask}, s3"); a("s_bitcmp0_b32 s3, 0"); a("s_cbranch_scc1 L_end")
    a("s_load_dwordx8 s[4:11], s[0:1], 0")
    a("s_load_dwordx4 s[12:15], s[0:1], 32")
    a("s_load_dwordx4 s[76:79], s[0:1], 48")
    if stamp or calib: a("s_memrealtime s[82:83]")
    a("v_lshrrev_b32 v1, 6, v0")
    a("v_and_b32 v0, 63, v0")
    if hmap == 0:
        if hrot: a(f"s_add_u32 s3, s2, {hrot}"); a(f"s_and_b32 s{sH}, s3, 15")
        else: a(f"s_and_b32 s{sH}, s2, 15")
        a(f"s_lshr_b32 s{sP}, s2, 4")
    elif hmap == 4:
        a(f"s_add_u32 s3, s2, {hrot}"); a("s_and_b32 s3, s3, 3"); a(f"s_bfe_u32 s{sH}, s2, 0x20003"); a(f"s_lshl2_add_u32 s{sH}, s{sH}, s3")
        a("s_bfe_u32 s3, s2, 0x10002"); a(f"s_lshr_b32 s{sP}, s2, 5"); a(f"s_lshl1_add_u32 s{sP}, s{sP}, s3")
    elif hmap == 5:
        a(f"s_add_u32 s3, s2, {hrot}"); a("s_and_b32 s3, s3, 3"); a(f"s_bfe_u32 s{sH}, s2, 0x20003"); a(f"s_lshl2_add_u32 s{sH}, s{sH}, s3")
        a("s_bfe_u32 s3, s2, 0x10002"); a(f"s_lshr_b32 s{sP}, s2, 5"); a(f"s_lshl3_add_u32 s{sP}, s3, s{sP}")
        a(f"s_cmp_eq_u32 s{sP}, 1"); a(f"s_cselect_b32 s3, 8, s{sP}"); a(f"s_cmp_eq_u32 s{sP}, 8"); a(f"s_cselect_b32 s{sP}, 1, s3")
    elif hmap == 2:
        a(f"s_lshr_b32 s{sH}, s2, 4"); a(f"s_and_b32 s{sP}, s2, 15")
    elif hmap == 3:
        a(f"s_lshr_b32 s{sH}, s2, 4"); a(f"s_and_b32 s{sP}, s2, 7"); a(f"s_and_b32 s3, s{sH}, 7")
        a(f"s_cmp_eq_u32 s{sP}, s3"); a(f"s_cselect_b32 s96, 0, s{sP}"); a(f"s_cmp_eq_u32 s{sP}, 0"); a(f"s_cselect_b32 s{sP}, s3, s96")
        a(f"s_lshl_b32 s{sP}, s{sP}, 1"); a("s_bfe_u32 s3, s2, 0x10003"); a(f"s_or_b32 s{sP}, s{sP}, s3")
    elif hmap == 1:
        a(f"s_lshr_b32 s{sH}, s2, 4"); a(f"s_add_u32 s{sP}, s2, s{sH}"); a(f"s_and_b32 s{sP}, s{sP}, 15")
    if prot:
        a(f"s_add_u32 s{sP}, s{sP}, {prot}"); a(f"s_and_b32 s{sP}, s{sP}, 15")
    a(f"v_readfirstlane_b32 s{sW}, v1")
    if cpf:
        if cpf == 1: a(f"s_cmp_lt_u32 s{sW}, 4"); a("s_cbranch_scc1 L_npf")
        a("s_getpc_b64 s[90:91]")
        a("L_pc:")
        a("v_lshlrev_b32 v160, 7, v0")
        for i in range(2):
            if i: a("v_add_u32 v160, 8192, v160")
            a("v_min_u32 v161, L_end-L_pc, v160"); a("v_mov_b32 v163, s91")
            a("v_add_co_u32 v162, vcc, s90, v161"); a("s_nop 1"); a("v_addc_co_u32 v163, vcc, 0, v163, vcc")
            a(f"global_load_dword v{164+i}, v[162:163], off")
        a("L_npf:")
    a(f"s_add_u32 s96, s{sP}, {NSP}"); a(f"s_sub_u32 s97, {31+NSP}, s{sP}"); a(f"s_sub_u32 s3, {2*NSP-1}, s{sP}")
    a(f"s_cmp_lt_u32 s{sP}, {NSP}")
    a(f"s_cselect_b32 s{sRole}, 1, 0")
    a(f"s_cselect_b32 s96, s{sP}, s96"); a(f"s_cselect_b32 s97, s3, s97")
    a(f"v_and_b32 v{t[0]}, 31, v0")
    a(f"v_lshrrev_b32 v{t[1]}, 5, v0"); a(f"v_and_b32 v{t[2]}, 15, v0")
    a(f"v_lshl_add_u32 v{t[1]}, v{t[1]}, 4, v{t[2]}")
    a(f"v_lshlrev_b32 v{t[2]}, 2, v{t[0]}"); a(f"v_lshlrev_b32 v{t[3]}, 2, v{t[1]}")
    a(f"v_lshlrev_b32 v{t[4]}, 4, v{t[0]}")
    a(f"s_lshl_b32 s{sTmp}, s{sW}, 12")
    a(f"v_lshl_add_u32 v{t[5]}, v0, 4, s{sTmp}")
    a("s_waitcnt lgkmcnt(0)")
    if ptrace: a("s_memrealtime s[100:101]"); a("s_waitcnt lgkmcnt(0)"); a("v_writelane_b32 v167, s100, 0")
    srd(32, 12, 128); srd(28, 10, 16384)
    a(f"buffer_load_dword v{vCtx}, v{t[2]}, s[32:35], 0 offen")
    a(f"buffer_load_dword v{t[6]}, v{t[3]}, s[32:35], 0 offen")
    R0 = t[8]; X = [t[12], t[16], t[20], t[24]]
    a(f"buffer_load_dwordx4 v[{R0}:{R0+3}], v{t[4]}, s[28:31], 0 offen")
    for i in range(4): a(f"buffer_load_dwordx4 v[{X[i]}:{X[i]+3}], v{t[5]}, s[28:31], 0 offen offset:{1024*i}")
    srd(16, 6, KVBYTES); srd(20, 8, KVBYTES); srd(24, 4, 262144); srd(36, 14, 262144)
    srd(84, 76, 256); srd(88, 78, WSZ)
    a(f"v_lshrrev_b32 v{vT[0]}, 4, v0")
    u0,u1 = t[28], t[29]
    a(f"v_and_b32 v{u0}, 15, v0"); a(f"v_lshlrev_b32 v{u0}, 4, v{u0}")
    a(f"v_lshl_add_u32 v{vVoff}, v{vT[0]}, 12, v{u0}")
    a(f"v_and_b32 v{u0}, 3, v0"); a(f"v_lshlrev_b32 v{u0}, 4, v{u0}")
    a(f"v_lshl_add_u32 v{u0}, v{vT[0]}, 6, v{u0}")
    a(f"v_bfe_u32 v{u1}, v0, 2, 2"); a(f"v_lshl_add_u32 v{vKoff}, v{u1}, 12, v{u0}")
    a(f"v_bfe_u32 v{u1}, v0, 2, 1"); a(f"v_lshl_add_u32 v{vQoff}, v{u1}, 8, v{u0}")
    a(f"v_and_b32 v{u1}, 1, v0"); a(f"v_lshlrev_b32 v{u1}, 4, v{u1}")
    a(f"v_mov_b32 v{vM0}, 0xffff"); a(f"v_lshlrev_b32 v{vM0}, v{u1}, v{vM0}")
    a(f"v_bfe_i32 v{u1}, v0, 1, 1")
    a(f"v_and_b32 v{vM1}, v{vM0}, v{u1}"); a(f"v_xor_b32 v{vM0}, v{vM0}, v{vM1}")
    a(f"v_and_b32 v{vShift}, 8, v0"); a(f"v_lshrrev_b32 v{vShift}, 1, v{vShift}")
    vSh = [vShift, vT[1], vT[2], vT[3]]
    for j in range(1,4): a(f"v_add_u32 v{vSh[j]}, {8*j}, v{vShift}")
    a(f"v_mov_b32 v{vScale}, 0x{SC:08x}"); a(f"v_mov_b32 v{vNinf}, 0xff800000")
    for i in range(8): a(f"v_mov_b32 v{vOa+i}, 0")
    a(f"v_mov_b32 v{vMx}, 0xf149f2ca"); a(f"v_mov_b32 v{vLs}, 0")
    for j in range(3): a(f"v_mov_b32 v{vP+4*j}, 0"); a(f"v_mov_b32 v{vP+4*j+1}, 0")
    ee = [136+j for j in range(4)]; yy = [140+j for j in range(4)]; ad = [144+j for j in range(4)]; qo = [148+j for j in range(4)]
    rm = [128+j for j in range(4)]; mu = [132+j for j in range(4)]; vSx, vSxw = 157, 158
    a(f"v_lshlrev_b32 v{ee[0]}, 2, v0")
    for j in range(1,4): a(f"v_add_u32 v{ee[j]}, {j}, v{ee[0]}")
    a(f"v_mov_b32 v{vSx}, {SX}")
    a(f"s_lshl_b32 s72, s{sW}, 2"); a(f"s_add_u32 s72, s72, {SX}"); a(f"v_mov_b32 v{vSxw}, s72")
    a(f"v_cmp_eq_u32 s[66:67], 0, v{vShift}")
    code = {"L":0x200, "M":0, "H":0x100, "X":0x300}
    a(f"s_cmp_eq_u32 s{sRole}, 0"); a(f"s_cselect_b32 s75, {tail}, {code[dlev]|(tail if dtail is None else dtail)}")
    a(f"v_mov_b32 v155, {SX+16}"); a(f"v_mov_b32 v{vMode}, s75")
    a(f"ds_write2_b32 v155, v155, v{vMode} offset0:0 offset1:1")
    if ptrace: a("s_memrealtime s[100:101]"); a("s_waitcnt lgkmcnt(0)"); a("v_writelane_b32 v167, s100, 1")
    ko, ks_, d, acc = t[30], t[31], t[32], t[33]
    a("s_waitcnt vmcnt(5)")
    if ptrace: a("s_memrealtime s[100:101]"); a("s_waitcnt lgkmcnt(0)"); a("v_writelane_b32 v167, s100, 2")
    a(f"v_add_u32 v{vEff}, -1, v{vCtx}"); a(f"v_add_u32 v{t[6]}, -1, v{t[6]}")
    a(f"v_min_u32 v{vEff}, 0x7ff, v{vEff}"); a(f"v_min_u32 v{t[6]}, 0x7ff, v{t[6]}")
    a(f"v_lshl_add_u32 v{ko}, v{t[6]}, 5, v{t[1]}"); a(f"v_lshl_add_u32 v{ks_}, v{vEff}, 5, v{t[0]}")
    a(f"v_add_u32 v{vEff}, 1, v{vEff}")
    a(f"v_sub_u32 v{d}, v{ko}, v{ks_}"); a(f"v_lshrrev_b32 v{acc}, 31, v{d}")
    for k in range(1,16):
        a(f"v_sub_u32_dpp v{d}, v{ko}, v{ks_} row_ror:{k} row_mask:0xf bank_mask:0xf")
        a(f"v_alignbit_b32 v{acc}, v{acc}, v{d}, 31")
    a(f"v_bcnt_u32_b32 v{acc}, v{acc}, 0"); a(f"v_mov_b32 v{d}, v{acc}")
    a("s_nop 1")
    a(f"v_permlane32_swap_b32 v{d}, v{acc}"); a(f"v_add_u32 v{acc}, v{d}, v{acc}")
    a(f"v_cmp_eq_u32 s[60:61], s96, v{acc}"); a(f"v_cmp_eq_u32 s[62:63], s97, v{acc}")
    a(f"v_cmp_eq_u32 s[64:65], 0, v{acc}")
    a(f"s_ff1_i32_b32 s{sA}, s60"); a(f"s_ff1_i32_b32 s{sB}, s62"); a("s_ff1_i32_b32 s69, s64")
    if order == 1: a(f"s_min_u32 s3, s{sA}, s{sB}"); a(f"s_max_u32 s{sB}, s{sA}, s{sB}"); a(f"s_mov_b32 s{sA}, s3")
    if order == 2: a(f"s_max_u32 s3, s{sA}, s{sB}"); a(f"s_min_u32 s{sB}, s{sA}, s{sB}"); a(f"s_mov_b32 s{sA}, s3")
    if order == 3: a(f"s_mov_b32 s3, s{sB}"); a(f"s_mov_b32 s{sB}, s{sA}"); a(f"s_mov_b32 s{sA}, s3")
    a(f"v_readlane_b32 s{sCA}, v{vEff}, s{sA}"); a(f"v_readlane_b32 s{sCB}, v{vEff}, s{sB}")
    a(f"v_readlane_b32 s{sS}, v{vEff}, s69")
    a(f"v_readlane_b32 s70, v{vCtx}, s{sA}"); a(f"v_readlane_b32 s71, v{vCtx}, s{sB}")
    a(f"s_cmp_ge_u32 s{sW}, 4"); a("s_cbranch_scc1 L_coll")
    a(f"s_lshl_b32 s99, s{sA}, 9"); a(f"s_lshl_b32 s92, s{sW}, 2")
    a(f"v_lshl_add_u32 v{t[0]}, v0, 4, s99")
    a(f"s_sub_u32 s94, s{sCA}, s92"); a(f"s_sub_u32 s93, 12, s92")
    a(f"s_add_u32 s96, s94, 15"); a(f"s_lshr_b32 s96, s96, 4")
    a(f"s_lshl_b32 s92, s92, 12"); a(f"s_lshl_b32 s72, s{sH}, 8"); a("s_add_u32 s92, s92, s72")
    a(f"s_lshr_b32 s{sS}, s{sS}, 6")
    if ptrace: a("s_memrealtime s[100:101]"); a("s_waitcnt lgkmcnt(0)"); a("v_writelane_b32 v167, s100, 3")
    a("s_waitcnt vmcnt(0)")
    if ptrace: a("s_memrealtime s[100:101]"); a("s_waitcnt lgkmcnt(0)"); a("v_writelane_b32 v167, s100, 4")
    for i in range(4): a(f"ds_write_b128 v{t[5]}, v[{X[i]}:{X[i]+3}] offset:{BT+1024*i}")
    a(f"v_xor_b32 v{acc}, v{X[0]}, v{R0}"); a(f"v_xor_b32 v{d}, v{X[2]}, v{R0}")
    for i in range(2):
        for c in range(4):
            if i == 0 and c == 0: continue
            a(f"v_bitop3_b32 v{acc}, v{acc}, v{X[i]+c}, v{R0+c} bitop3:0xf6")
            a(f"v_bitop3_b32 v{d}, v{d}, v{X[2+i]+c}, v{R0+c} bitop3:0xf6")
    a(f"v_or_b32 v{acc}, v{acc}, v{d}")
    a(f"v_cmp_ne_u32 vcc, 0, v{acc}")
    a("s_or_b32 s69, vcc_lo, vcc_hi"); a("s_ff1_i32_b32 s69, s69")
    a(f"v_mov_b32 v{d}, s69")
    a(f"ds_write_b32 v{vSxw}, v{d}")
    a("s_waitcnt lgkmcnt(0)")
    a("s_barrier")
    if ptrace: a("s_memrealtime s[100:101]"); a("s_waitcnt lgkmcnt(0)"); a("v_writelane_b32 v167, s100, 5")
    a(f"ds_read_b128 v[{t[4]}:{t[7]}], v{vSx}")
    a(f"ds_read_b128 v[{vList[0]}:{vList[3]}], v{t[0]} offset:{BT}")
    if prio: a(f"s_setprio {prio}")
    a("s_waitcnt lgkmcnt(1)")
    a(f"v_min3_u32 v{t[4]}, v{t[4]}, v{t[5]}, v{t[6]}"); a(f"v_min3_u32 v{t[4]}, v{t[4]}, v{t[7]}, s{sS}")
    a("s_waitcnt lgkmcnt(0)")
    a(f"v_readfirstlane_b32 s{sS}, v{t[4]}")
    for j in range(4): a(f"v_lshl_add_u32 v{vList[j]}, v{vList[j]}, 16, s92")
    a(f"s_and_b32 s{sTau}, s{sS}, {-NSP & 0xffffffff}")
    for j in range(4): a(f"v_readlane_b32 s{sSet[0]+j}, v{vList[j]}, s{sTau}")
    a(f"s_lshr_b32 s98, s{sTau}, {LG}"); a(f"s_lshl_b32 s98, s98, 1")
    st(94 if not stamp else 30)
    def issue(par, k):
        dd, kk = divmod(k, 8); pp = (par+dd) % RT
        r = RING + (pp*8+kk)*4
        srd_, vo = ("s[16:19]", vKoff) if kk < 4 else ("s[20:23]", vVoff)
        a(f"buffer_load_dwordx4 v[{r}:{r+3}], v{vo}, {srd_}, s{sSet[pp]+(kk&3)} offen{fp}")
    def body(tag, N, par):
        dmax = (7+N)//8
        a(f"L_{tag}{par}:")
        a(f"s_add_u32 s{sTmp}, s{sTau}, {dmax}")
        a(f"v_readlane_b32 s{sPack}, v{vPackL}, s{sTau}")
        stt = sSet[(par+dmax)%RT]
        for j in range(4): a(f"v_readlane_b32 s{stt+j}, v{vList[j]}, s{sTmp}")
        for j in range(4): a(f"v_bfe_u32 v{vS[j]}, s{sPack}, v{vSh[j]}, 4")
        if trace:
            a("s_memrealtime s[100:101]"); a("s_waitcnt lgkmcnt(0)"); a(f"s_mov_b32 m0, s{sTau}"); a(f"v_writelane_b32 v{vEff}, s100, m0")
        a(f"s_sub_u32 s69, s{sT}, s{sTau}")
        if usemode:
            a("s_waitcnt lgkmcnt(0)"); a(f"v_readfirstlane_b32 s70, v{vMode}")
            a(f"v_mov_b32 v{vX}, s69"); a(f"ds_write_b32 v{vQoff}, v{vX}"); a(f"ds_read_b32 v{vMode}, v{vQoff} offset:4")
            a("s_and_b32 s71, s70, 0xff"); a("s_cmp_le_u32 s69, s71"); a("s_cselect_b32 s70, 0x300, s70")
            a("s_bitcmp1_b32 s70, 8"); a("s_cselect_b64 vcc, -1, 0")
            a(f"s_add_u32 s{sTau}, s{sTau}, 1")
            a("s_bitcmp1_b32 s70, 9")
        else:
            a(f"v_mov_b32 v{vX}, s69"); a(f"ds_write_b32 v{vQoff}, v{vX}")
            if xh or dt: a(f"s_cmp_le_u32 s69, s3"); a("s_cselect_b64 vcc, -1, 0")
            else: a(f"s_cmp_le_u32 s69, {max(tail,tailh)}"); a("s_cselect_b64 vcc, -1, 0")
            if iso: a(f"s_cmp_ge_u32 s{stt}, {iso}"); a("s_cselect_b64 vcc, -1, vcc")
            if head: a(f"s_cmp_lt_u32 s{sTau}, {head}"); a("s_cselect_b64 vcc, -1, vcc")
            a(f"s_add_u32 s{sTau}, s{sTau}, 1")
            if tailh: a(f"s_cmp_le_u32 s69, {tail}")
        for j in range(4): a(f"v_cmp_gt_u32 s[{sMask[j]}:{sMask[j]+1}], v{vS[j]}, v{vT[0]}")
        for j in range(4): a(f"v_cndmask_b32 v{vS[j]}, v{vNinf}, 0, s[{sMask[j]}:{sMask[j]+1}]")
        def wait_issue(k):
            if usemode:
                a("s_cbranch_vccnz 3"); a("s_cbranch_scc0 1"); a(f"s_waitcnt vmcnt({NLO-1})"); a(f"s_waitcnt vmcnt({NP-1})")
                a("s_cbranch_scc1 1"); a(f"s_waitcnt vmcnt({NHI-1})")
            else:
                a("s_cbranch_vccnz 1"); a(f"s_waitcnt vmcnt({NP-1})")
                if tailh: a("s_cbranch_scc1 1"); a(f"s_waitcnt vmcnt({NHI-1})")
            a(f"s_waitcnt vmcnt({N-1})"); issue(par, k+N)
        def dpp(j):
            for i in range(4):
                a(f"v_fmac_f32_dpp v{vS[j]}, v{vD[j%3]+i}, v{vScale} quad_perm:[{i},{i},{i},{i}] row_mask:0xf bank_mask:0xf")
        for j in range(4):
            r = RING + (par*8+j)*4
            wait_issue(j)
            a(f"v_mfma_f32_16x16x32_bf16 v[{vD[j%3]}:{vD[j%3]+3}], v[{r}:{r+3}], v[{vQ}:{vQ+3}], 0")
            if j == 2: a("s_nop 1")
            if j >= 2: dpp(j-2)
        dpp(2); dpp(3)
        a(f"v_max3_f32 v{vX}, v{vS[0]}, v{vS[1]}, v{vS[2]}")
        a(f"v_max3_f32 v{vX}, v{vX}, v{vS[3]}, v{vMx}")
        a(f"v_mov_b32 v{vY}, v{vX}"); a("s_nop 1")
        a(f"v_permlane16_swap_b32 v{vY}, v{vX}"); a(f"v_max_f32 v{vX}, v{vX}, v{vY}")
        a(f"v_mov_b32 v{vY}, v{vX}"); a("s_nop 1")
        a(f"v_permlane32_swap_b32 v{vY}, v{vX}"); a(f"v_max_f32 v{vX}, v{vX}, v{vY}")
        a(f"v_sub_f32 v{vAl}, v{vMx}, v{vX}")
        for j in range(4): a(f"v_sub_f32 v{vS[j]}, v{vS[j]}, v{vX}")
        a(f"v_exp_f32 v{vAl}, v{vAl}")
        for j in range(4): a(f"v_exp_f32 v{vS[j]}, v{vS[j]}")
        a(f"v_mov_b32 v{vMx}, v{vX}")
        pb = [vD[0]+j for j in range(4)]
        for j in range(4): a(f"v_cvt_pk_bf16_f32 v{pb[j]}, v{vS[j]}, v{vS[j]}")
        for i in range(8): a(f"v_mul_f32 v{vOa+i}, v{vAl}, v{vOa+i}")
        def ands(j):
            b = vP+2+4*(j&1)
            a(f"v_and_b32 v{b}, v{vM0}, v{pb[j]}"); a(f"v_and_b32 v{b+1}, v{vM1}, v{pb[j]}")
        ands(0); ands(1)
        a(f"v_fma_f32 v{vLs}, v{vLs}, v{vAl}, v{vS[0]}")
        a(f"v_add_f32 v{vS[1]}, v{vS[1]}, v{vS[2]}")
        a(f"v_add_f32 v{vLs}, v{vLs}, v{vS[3]}")
        a(f"v_add_f32 v{vLs}, v{vLs}, v{vS[1]}")
        for j in range(4):
            r = RING + (par*8+4+j)*4; b = vP+2+4*(j&1)
            wait_issue(4+j)
            a(f"v_mfma_f32_16x16x32_bf16 v[{vOa}:{vOa+3}], v[{r}:{r+3}], v[{b}:{b+3}], v[{vOa}:{vOa+3}]")
            a(f"v_mfma_f32_16x16x32_bf16 v[{vOb}:{vOb+3}], v[{r}:{r+3}], v[{b-2}:{b+1}], v[{vOb}:{vOb+3}]")
            if j < 2: ands(j+2)
    assert (8 < NM <= 15 or 16 < NM <= 23) and NP <= 8
    a(f"s_cmp_eq_u32 s{sRole}, 0"); a(f"s_cselect_b32 s98, 0, s98")
    if noshared: a("s_mov_b32 s98, 0")
    a(f"s_lshr_b32 s3, s96, 2"); a(f"s_cmp_gt_u32 s3, s{sTau}"); a("s_cselect_b32 s3, s98, 1")
    a("s_cmp_lg_u32 s3, 0"); a("s_cbranch_scc1 L_lst")
    for k in range(NP): issue(0, k)
    a("L_lst:")
    if ptrace: a("s_memrealtime s[100:101]"); a("s_waitcnt lgkmcnt(0)"); a("v_writelane_b32 v167, s100, 6")
    a(f"s_lshl_b32 s75, s{sH}, 9")
    a(f"s_lshl_b32 s{sOutA}, s{sA}, 13"); a(f"s_lshl_b32 s{sOutB}, s{sB}, 13")
    a(f"s_add_u32 s{sOutA}, s{sOutA}, s75"); a(f"s_add_u32 s{sOutB}, s{sOutB}, s75")
    a("s_cmp_lt_i32 s70, 1"); a(f"s_cselect_b32 s70, {OOB}, s{sOutA}")
    a("s_cmp_lt_i32 s71, 1"); a(f"s_cselect_b32 s71, {OOB}, s{sOutB}")
    a(f"v_mov_b32 v152, s71"); a(f"v_mov_b32 v153, s70")
    a(f"v_cndmask_b32 v152, v152, v153, s[66:67]")
    a(f"v_add_u32 v{vQoff}, v{vQoff}, v152")
    a(f"buffer_load_dwordx4 v[{vQ}:{vQ+3}], v{vQoff}, s[24:27], 0 offen")
    a(f"s_sub_u32 s95, s{sCB}, s93"); a(f"s_add_u32 s97, s95, 15"); a(f"s_lshr_b32 s97, s97, 4")
    a(f"s_add_u32 s{sT}, s96, s97")
    for j in range(4): a(f"v_cmp_gt_u32 s[{sMask[j]}:{sMask[j]+1}], s96, v{ee[j]}")
    a(f"s_sub_u32 s75, s{sB}, s{sA}"); a("s_lshl_b32 s97, s75, 7"); a(f"s_add_u32 s97, s97, s{sT}"); a("s_sub_u32 s97, s97, 1")
    for j in range(4): a(f"v_sub_u32 v{yy[j]}, s97, v{ee[j]}")
    a("s_lshl_b32 s75, s75, 11"); a("s_add_u32 s95, s95, s75")
    for j in range(4): a(f"v_cndmask_b32 v{yy[j]}, v{yy[j]}, v{ee[j]}, s[{sMask[j]}:{sMask[j]+1}]")
    a(f"s_lshl_b32 s93, s93, 12"); a("s_add_u32 s93, s93, s72")
    for j in range(4):
        a(f"v_lshl_add_u32 v{ad[j]}, v{yy[j]}, 2, s99")
        a(f"ds_read_b32 v{vList[j]}, v{ad[j]} offset:{BT}")
    a(f"v_mov_b32 v152, s92"); a(f"v_mov_b32 v153, s93"); a(f"v_mov_b32 v154, s94"); a(f"v_mov_b32 v155, s95")
    a(f"s_lshl_b32 s72, s{sTau}, 2"); a(f"s_sub_u32 s72, s{sT}, s72")
    for j in range(4): a(f"v_cndmask_b32 v{qo[j]}, v153, v152, s[{sMask[j]}:{sMask[j]+1}]")
    for j in range(4): a(f"v_cndmask_b32 v{rm[j]}, v155, v154, s[{sMask[j]}:{sMask[j]+1}]")
    for j in range(4): a(f"v_cndmask_b32 v{mu[j]}, 16, 1, s[{sMask[j]}:{sMask[j]+1}]")
    for j in range(4): a(f"v_cmp_gt_u32 s[{sMask[j]}:{sMask[j]+1}], s72, v{ee[j]}")
    a(f"s_add_u32 s{sT}, s72, 3"); a(f"s_lshr_b32 s{sT}, s{sT}, 2")
    a(f"v_mov_b32 v155, {OOB}")
    for j in range(4): a(f"v_mad_i32_i24 v{rm[j]}, v{yy[j]}, -16, v{rm[j]}")
    for j in range(4): a(f"v_cndmask_b32 v{mu[j]}, 0, v{mu[j]}, s[{sMask[j]}:{sMask[j]+1}]")
    a(f"s_add_u32 s{sTmp}, s{sTau}, 1")
    for j in range(4): a(f"v_med3_i32 v{rm[j]}, v{rm[j]}, 0, 4")
    a("s_waitcnt lgkmcnt(0)")
    for j in range(4): a(f"v_lshl_add_u32 v{vList[j]}, v{vList[j]}, 16, v{qo[j]}")
    for j in range(4): a(f"v_cndmask_b32 v{vList[j]}, v155, v{vList[j]}, s[{sMask[j]}:{sMask[j]+1}]")
    for j in range(4): a(f"v_mul_u32_u24 v{rm[j]}, v{rm[j]}, v{mu[j]}")
    for j in range(4): a(f"v_readlane_b32 s{sSet[0]+j}, v{vList[j]}, s{sTau}")
    for j in range(4): a(f"v_readlane_b32 s{sSet[1]+j}, v{vList[j]}, s{sTmp}")
    if RT == 3:
        a(f"s_add_u32 s{sTmp}, s{sTau}, 2")
        for j in range(4): a(f"v_readlane_b32 s{sSet[2]+j}, v{vList[j]}, s{sTmp}")
    a(f"v_lshl_or_b32 v{rm[0]}, v{rm[1]}, 8, v{rm[0]}"); a(f"v_lshl_or_b32 v{rm[2]}, v{rm[3]}, 8, v{rm[2]}")
    a(f"v_lshl_or_b32 v{vPackL}, v{rm[2]}, 16, v{rm[0]}")
    a("s_cmp_lg_u32 s98, 0"); a("s_cbranch_scc1 L_shwg")
    a("s_cmp_eq_u32 s3, 0"); a("s_cbranch_scc1 L_main")
    for k in range(NP): issue(0, k)
    a("L_main:")
    a(f"v_mov_b32 v{vQoff}, {SX+16}")
    e = [160,161,vCtx,162,163,164,165,166,vEff if not trace else 167]
    a(f"s_mul_i32 s70, s{sW}, {WSTR}"); a(f"s_add_u32 s70, s70, {OB}")
    a(f"v_lshl_add_u32 v{e[0]}, v0, 4, s70")
    a(f"s_lshl_b32 s71, s{sW}, 2"); a(f"s_add_u32 s71, s71, {MB}")
    a(f"v_bfe_u32 v{e[1]}, v0, 2, 2"); a(f"v_lshl_add_u32 v{e[1]}, v{e[1]}, 5, s71")
    a(f"s_lshl_b32 s72, s{sW}, 5"); a(f"s_add_u32 s72, s72, {MB}"); a(f"v_mov_b32 v{e[2]}, s72")
    a(f"s_lshl_b32 s72, s{sW}, 6"); a(f"s_add_u32 s72, s72, {OB}")
    a(f"v_lshl_add_u32 v{e[3]}, v{vT[0]}, 8, s72")
    a(f"v_and_b32 v{e[4]}, 1, v0"); a(f"v_lshl_add_u32 v{e[3]}, v{e[4]}, 5, v{e[3]}")
    a(f"v_bfe_u32 v{e[4]}, v0, 2, 2"); a(f"v_lshl_add_u32 v{e[3]}, v{e[4]}, 2, v{e[3]}")
    a(f"v_bfe_u32 v{e[4]}, v0, 1, 1"); a(f"v_mul_u32_u24 v{e[4]}, {ESTR}, v{e[4]}"); a(f"v_add_u32 v{e[3]}, v{e[3]}, v{e[4]}")
    for w in range(1,4): a(f"v_add_u32 v{e[3+w]}, {w*WSTR}, v{e[3]}")
    a(f"s_lshl_b32 s72, s{sW}, 8"); a(f"s_add_u32 s72, s72, {SH}")
    a(f"v_lshl_add_u32 v{e[7]}, v{vT[0]}, 6, s72")
    a(f"v_bfe_u32 v{e[8]}, v0, 1, 2"); a(f"v_lshl_add_u32 v{e[7]}, v{e[8]}, 4, v{e[7]}")
    a(f"v_bfe_u32 v{e[8]}, v0, 3, 1"); a(f"v_lshl_add_u32 v{e[7]}, v{e[8]}, 3, v{e[7]}")
    a(f"v_and_b32 v{e[8]}, 1, v0"); a(f"v_lshl_add_u32 v{e[7]}, v{e[8]}, 2, v{e[7]}")
    a(f"s_cmp_ge_u32 s{sW}, 2"); a(f"s_cselect_b32 s75, s{sOutB}, s{sOutA}")
    a(f"s_and_b32 s70, s{sW}, 1"); a("s_lshl_b32 s70, s70, 8"); a("s_add_u32 s75, s75, s70")
    a(f"v_lshlrev_b32 v{e[8]}, 2, v0")
    if onlyduty: a(f"s_mov_b32 s{sT}, 0")
    if dt:
        a(f"s_and_b32 s3, s{sH}, 3"); a("s_cmp_eq_u32 s3, 1"); a(f"s_cselect_b32 s3, {dt[1]}, {dt[0]}"); a(f"s_cselect_b32 s70, {dt[2]}, {tail}")
        a(f"s_cmp_eq_u32 s{sRole}, 0"); a(f"s_cselect_b32 s3, s70, s3")
    if xh:
        a("s_getreg_b32 s3, hwreg(HW_REG_XCC_ID, 0, 3)"); a(f"s_lshr_b32 s3, {xh[0]}, s3"); a("s_bitcmp1_b32 s3, 0"); a(f"s_cselect_b32 s3, {xh[1]}, {xh[2]}")
    a(f"s_cmp_ge_u32 s{sTau}, s{sT}"); a("s_cbranch_scc1 L_epi")
    for k in range(NP, NM):
        if not head: a(f"s_waitcnt vmcnt({NP-1})")
        issue(0, k)
    for par in range(RT):
        body("p", NM, par)
        a(f"s_cmp_ge_u32 s{sTau}, s{sT}")
        if par < RT-1: a("s_cbranch_scc1 L_epi")
        else: a(f"s_cbranch_scc0 L_p0")
    a("L_epi:")
    st(96)
    a(f"v_mov_b32 v{vX}, 0"); a(f"ds_write_b32 v{vQoff}, v{vX}")
    a(f"v_mov_b32 v{vY}, v{vLs}"); a("s_nop 1")
    a(f"v_permlane16_swap_b32 v{vY}, v{vLs}"); a(f"v_add_f32 v{vLs}, v{vLs}, v{vY}")
    a(f"v_mov_b32 v{vY}, v{vLs}"); a("s_nop 1")
    a(f"v_permlane32_swap_b32 v{vY}, v{vLs}"); a(f"v_add_f32 v{vLs}, v{vLs}, v{vY}")
    a(f"ds_write2_b32 v{e[1]}, v{vMx}, v{vLs} offset0:0 offset1:32")
    a(f"ds_write_b128 v{e[0]}, v[{vOa}:{vOa+3}]")
    a(f"ds_write_b128 v{e[0]}, v[{vOb}:{vOb+3}] offset:{ESTR}")
    a("s_waitcnt vmcnt(0) lgkmcnt(0)")
    a("s_barrier")
    NPART = 4 + (0 if noshared else NSP)
    E = RING
    a(f"ds_read_b128 v[{E}:{E+3}], v{e[2]}"); a(f"ds_read_b128 v[{E+4}:{E+7}], v{e[2]} offset:16")
    a(f"ds_read_b128 v[{E+8}:{E+11}], v{e[2]} offset:128"); a(f"ds_read_b128 v[{E+12}:{E+15}], v{e[2]} offset:144")
    for w in range(4): a(f"ds_read2_b32 v[{E+16+2*w}:{E+17+2*w}], v{e[3+w]} offset0:0 offset1:4")
    for s in range(NPART-4): a(f"ds_read_b32 v{E+25+2*s}, v{e[7]} offset:{1024*s}")
    a(f"s_waitcnt lgkmcnt({NPART+2})")
    a(f"v_max3_f32 v{vX}, v{E}, v{E+1}, v{E+2}")
    i = 3
    while i < NPART:
        if i+1 < NPART: a(f"v_max3_f32 v{vX}, v{vX}, v{E+i}, v{E+i+1}"); i += 2
        else: a(f"v_max_f32 v{vX}, v{vX}, v{E+i}"); i += 1
    for w in range(NPART): a(f"v_sub_f32 v{E+w}, v{E+w}, v{vX}")
    for w in range(NPART): a(f"v_exp_f32 v{E+w}, v{E+w}")
    a(f"s_waitcnt lgkmcnt({NPART})")
    a(f"v_mul_f32 v{vX}, v{E}, v{E+8}")
    for w in range(1,NPART): a(f"v_fmac_f32 v{vX}, v{E+w}, v{E+8+w}")
    a(f"v_rcp_f32 v{vX}, v{vX}")
    a("s_waitcnt lgkmcnt(0)")
    for s in range(NPART-4): a(f"v_lshlrev_b32 v{E+24+2*s}, 16, v{E+25+2*s}"); a(f"v_and_b32 v{E+25+2*s}, 0xffff0000, v{E+25+2*s}")
    a(f"v_mul_f32 v{vY}, v{E}, v{E+16}"); a(f"v_mul_f32 v{vAl}, v{E}, v{E+17}")
    for w in range(1,NPART):
        a(f"v_fmac_f32 v{vY}, v{E+w}, v{E+16+2*w}"); a(f"v_fmac_f32 v{vAl}, v{E+w}, v{E+17+2*w}")
    a(f"v_mul_f32 v{vY}, v{vY}, v{vX}"); a(f"v_mul_f32 v{vAl}, v{vAl}, v{vX}")
    a(f"v_cvt_pk_bf16_f32 v{vY}, v{vY}, v{vAl}")
    a(f"buffer_store_dword v{vY}, v{e[8]}, s[36:39], s75 offen")
    a("s_branch L_fin")

    a("L_coll:")
    a("s_waitcnt vmcnt(0) lgkmcnt(0)")
    a("s_barrier")
    a(f"ds_read_b128 v[{t[4]}:{t[7]}], v{vSx}")
    a(f"s_lshr_b32 s{sS}, s{sS}, 6")
    a("s_waitcnt lgkmcnt(0)")
    a(f"v_min3_u32 v{t[4]}, v{t[4]}, v{t[5]}, v{t[6]}"); a(f"v_min3_u32 v{t[4]}, v{t[4]}, v{t[7]}, s{sS}")
    a("v_lshlrev_b32 v1, 4, v0")
    a(f"v_readfirstlane_b32 s{sS}, v{t[4]}")
    a("v_and_b32 v4, 3, v0"); a("v_lshlrev_b32 v4, 5, v4"); a("v_lshrrev_b32 v5, 2, v0"); a("v_lshl_add_u32 v4, v5, 2, v4")
    a(f"v_add_u32 v4, {MB+16}, v4")
    a(f"s_lshr_b32 s{sS}, s{sS}, {LG}"); a(f"s_lshl_b32 s98, s{sS}, 1")
    st(30)
    if tpf:
        a(f"s_add_u32 s96, s{sCA}, 15"); a("s_lshr_b32 s96, s96, 4"); a(f"s_add_u32 s97, s{sCB}, 15"); a("s_lshr_b32 s97, s97, 4")
        a(f"s_add_u32 s{sT}, s96, s97")
        for j in range(4): a(f"v_cmp_gt_u32 s[{sMask[j]}:{sMask[j]+1}], s96, v{ee[j]}")
        a(f"s_sub_u32 s75, s{sB}, s{sA}"); a("s_lshl_b32 s97, s75, 7"); a(f"s_add_u32 s97, s97, s{sT}"); a("s_sub_u32 s97, s97, 1")
        for j in range(4): a(f"v_sub_u32 v{yy[j]}, s97, v{ee[j]}")
        a(f"s_lshl_b32 s99, s{sA}, 9")
        for j in range(4): a(f"v_cndmask_b32 v{yy[j]}, v{yy[j]}, v{ee[j]}, s[{sMask[j]}:{sMask[j]+1}]")
        for j in range(4):
            a(f"v_lshl_add_u32 v{ad[j]}, v{yy[j]}, 2, s99"); a(f"ds_read_b32 v{qo[j]}, v{ad[j]} offset:{BT}")
        a(f"s_lshl_b32 s{sTau}, s{sS}, {LG}"); a(f"s_lshl_b32 s72, s{sTau}, 2"); a(f"s_sub_u32 s72, s{sT}, s72")
        a(f"s_lshr_b32 s{sT}, s72, 2")
        a(f"s_lshl_b32 s72, s{sH}, 8"); a(f"s_add_u32 s52, s{sTau}, 2")
        a("s_waitcnt lgkmcnt(0)")
        for j in range(4): a(f"v_lshl_add_u32 v{qo[j]}, v{qo[j]}, 16, s72")
    def controller():
        a(f"v_mov_b32 v2, {SX+16}")
        for c,(R,rules) in enumerate(ctl):
            a(f"L_k{c}:"); a(f"s_sleep {csleep}"); a("ds_read_b32 v3, v2"); a("s_waitcnt lgkmcnt(0)"); a("v_readfirstlane_b32 s71, v3")
            a(f"s_cmp_gt_u32 s71, {R}"); a(f"s_cbranch_scc1 L_k{c}")
            a(f"s_cmp_le_u32 s71, 1"); a("s_cbranch_scc1 L_kend")
            a("s_mov_b64 exec, 1"); a("v_mov_b32 v3, 1")
            a(f"buffer_atomic_add v3, off, s[84:87], 0 offset:{128+4*c} sc0")
            a("s_waitcnt vmcnt(0)"); a("v_readfirstlane_b32 s71, v3")
            code = {"L":0x200, "M":0, "H":0x100, "X":0x300}
            for i,(th,lv,tl) in enumerate(rules):
                if i == 0: a(f"s_mov_b32 s72, {code[lv]|tl}")
                else: a(f"s_cmp_ge_u32 s71, {th}"); a(f"s_cselect_b32 s72, {code[lv]|tl}, s72")
            a("v_mov_b32 v3, s72"); a("ds_write_b32 v2, v3 offset:4")
            a("s_mov_b64 exec, -1")
        if hsw is not None:
            a(f"L_hs:"); a(f"s_sleep {csleep}"); a("ds_read_b32 v3, v2"); a("s_waitcnt lgkmcnt(0)"); a("v_readfirstlane_b32 s71, v3")
            a(f"s_cmp_gt_u32 s71, {hsw}"); a(f"s_cbranch_scc1 L_hs")
            a(f"v_mov_b32 v3, {tail}"); a("ds_write_b32 v2, v3 offset:4")
        a("L_kend:")
        if fb is not None:
            thH, thL, bias, tlH, tlL, fsl = fb["H"], fb["L"], fb["bias"], fb.get("tH", tail), fb.get("tL", tail), fb.get("sleep", 16)
            every = fb.get("every", 1)
            a(f"s_sub_u32 s60, s{sP}, 3"); a(f"s_cmp_eq_u32 s60, s{sH}"); a("s_cselect_b32 s60, -1, 0")
            a(f"s_cmp_lt_u32 s{sH}, 8"); a("s_cselect_b32 s60, s60, 0")
            a(f"s_lshl_b32 s61, s{sH}, 2")
            a("s_mov_b64 exec, 1")
            a("L_fb:")
            a(f"s_sleep {fsl}")
            a("buffer_load_dwordx4 v[12:15], off, s[84:87], 0 offset:128 sc1")
            a("buffer_load_dwordx4 v[16:19], off, s[84:87], 0 offset:144 sc1")
            a("ds_read_b32 v3, v2"); a("s_waitcnt lgkmcnt(0)"); a("v_readfirstlane_b32 s71, v3")
            a("s_add_u32 s62, s71, 1")
            a("s_cmp_eq_u32 s60, 0"); a("s_cbranch_scc1 L_fb1")
            a("s_cmp_ge_u32 s62, s60"); a("s_cbranch_scc1 L_fb1")
            a("s_cmp_gt_u32 s62, 0x1000"); a("s_cbranch_scc1 L_fb1")
            a(f"s_sub_u32 s60, s62, {every-1}"); a("s_max_i32 s60, s60, 1"); a("v_mov_b32 v10, s62")
            if not fb.get("now"): a("buffer_store_dword v10, off, s[84:87], s61 offset:128 sc1")
            a("L_fb1:")
            a("s_waitcnt vmcnt(0)")
            a("v_add3_u32 v20, v12, v13, v14"); a("v_min3_u32 v21, v12, v13, v14")
            a("v_add3_u32 v20, v20, v15, v16"); a("v_min3_u32 v21, v21, v15, v16")
            a("v_add3_u32 v20, v20, v17, v18"); a("v_min3_u32 v21, v21, v17, v18")
            a("v_add_u32 v20, v20, v19"); a("v_min_u32 v21, v21, v19")
            a("s_lshl_b32 s62, s62, 3"); a(f"s_add_u32 s62, s62, {bias}")
            a("v_readfirstlane_b32 s63, v20"); a("v_readfirstlane_b32 s64, v21")
            a("s_sub_u32 s62, s62, s63")
            a(f"s_cmp_ge_i32 s62, {thH}"); a(f"s_cselect_b32 s65, {0x100|tlH}, {tail}")
            a(f"s_cmp_le_i32 s62, {-thL}"); a(f"s_cselect_b32 s65, {0x200|tlL}, s65")
            if "X" in fb: a(f"s_cmp_ge_i32 s62, {fb['X']}"); a(f"s_cselect_b32 s65, {0x300}, s65")
            a("s_cmp_eq_u32 s64, 0"); a(f"s_cselect_b32 s65, {tail}, s65")
            a("s_cmp_gt_u32 s71, 0x1000"); a(f"s_cselect_b32 s65, {tail}, s65")
            a("v_mov_b32 v3, s65"); a("ds_write_b32 v2, v3 offset:4")
            a(f"s_cmp_gt_u32 s71, {wake}"); a("s_cbranch_scc1 L_fb")
            a("s_mov_b64 exec, -1")
    if noshared: controller()
    if not noshared:
        a("s_cmp_eq_u32 s98, 0"); a("s_cbranch_scc1 L_c2")
        a(f"s_cmp_eq_u32 s{sRole}, 0"); a("s_cbranch_scc1 L_c2")
        lK = [8,9,10,11]; lV = [12,13,14,15]; lL = 16
        a(f"s_mul_i32 s71, s98, s{sP}"); a("s_lshl_b32 s71, s71, 3")
        a(f"v_lshl_add_u32 v20, v0, 3, s71")
        a(f"ds_read_b64 v[{lL}:{lL+1}], v20 offset:{BT}")
        a("v_and_b32 v21, 15, v0"); a("v_lshrrev_b32 v22, 4, v0")
        for q in range(4):
            a(f"v_add_u32 v23, {4*q}, v22")
            a(f"v_lshlrev_b32 v25, 12, v23")
            if q: a(f"v_subrev_u32 v25, {1024*q}, v25")
            a(f"v_xor_b32 v24, v23, v21"); a(f"v_lshl_add_u32 v{lK[q]}, v24, 4, v25")
            a(f"v_and_b32 v24, 7, v23"); a("v_lshlrev_b32 v24, 1, v24"); a("v_xor_b32 v24, v24, v21"); a(f"v_lshl_add_u32 v{lV[q]}, v24, 4, v25")
        a(f"s_lshl_b32 s70, s{sH}, 8")
        a("s_waitcnt lgkmcnt(0)")
        a(f"v_lshl_add_u32 v{lL}, v{lL}, 16, s70"); a(f"v_lshl_add_u32 v{lL+1}, v{lL+1}, 16, s70")
        a("s_mov_b32 s72, 0")
        a("s_mov_b32 s99, 0")
        def lstage():
            a(f"v_readlane_b32 s50, v{lL}, s72"); a(f"v_readlane_b32 s51, v{lL+1}, s72")
            a("s_and_b32 s75, s72, 3"); a("s_lshl_b32 s75, s75, 14"); a("s_add_u32 s72, s72, 1")
            for b in range(2):
                for (srd_, vo, off) in (("s[16:19]", lK, 0), ("s[20:23]", lV, 8192)):
                    a(f"s_add_u32 m0, s75, {off+4096*b}"); a("s_nop 0")
                    for q in range(4): a(f"buffer_load_dwordx4 v{vo[q]}, {srd_}, s{50+b} offen offset:{1024*q}{fs} lds")
        a("L_lp:")
        lstage()
        a(f"s_min_u32 s71, s98, {DS}"); a("s_cmp_lt_u32 s72, s71"); a("s_cbranch_scc1 L_lp")
        a("L_ll:")
        a("s_sub_u32 s71, s72, s99")
        for dd in range(DS, 1, -1):
            a(f"s_cmp_eq_u32 s71, {dd}"); a(f"s_cbranch_scc1 L_lw{dd}")
        a("s_waitcnt vmcnt(0)")
        for dd in range(2, DS+1):
            a(f"L_lw{dd}:"); a(f"s_waitcnt vmcnt({16*(dd-1)})")
        a("s_barrier")
        a("s_add_u32 s99, s99, 1")
        a("s_cmp_ge_u32 s72, s98"); a("s_cbranch_scc1 L_ln")
        lstage()
        a("L_ln:")
        a("s_cmp_lt_u32 s99, s98"); a("s_cbranch_scc1 L_ll")
        a(f"s_mul_i32 s70, s{sH}, {NSP}"); a(f"s_add_u32 s70, s70, s{sP}")
        a(f"s_lshl_b32 s71, s70, 14")
        a(f"v_mul_u32_u24 v23, {RSTR-256}, v22"); a("v_add_u32 v23, v23, v1")
        a("v_lshlrev_b32 v24, 3, v0")
        a(f"v_add_u32 v25, {MLST}, v24")
        a("s_barrier"); a("s_barrier")
        if nostore: a("s_branch L_c2")
        a(f"ds_read_b64 v[26:27], v25")
        for w in range(2):
            for dt in range(8): a(f"ds_read_b128 v[{64+32*w+4*dt}:{67+32*w+4*dt}], v23 offset:{STG+4*RSTR*(8*w+dt)}")
            for dt in range(8):
                a(f"s_waitcnt lgkmcnt({7-dt})")
                a(f"buffer_store_dwordx4 v[{64+32*w+4*dt}:{67+32*w+4*dt}], v1, s[88:91], s71 offen offset:{1024*(dt&3)}{sfl}")
                if dt&3 == 3: a("s_add_u32 s71, s71, 4096")
                if sgap: a(f"s_waitcnt vmcnt({sgap-1})")
        a(f"s_lshl_b32 s72, s70, 9"); a(f"s_add_u32 s72, s72, {WSML}")
        a(f"buffer_store_dwordx2 v[26:27], v24, s[88:91], s72 offen{sfl}")
        a("s_lshl_b32 s70, s70, 2"); a("v_mov_b32 v2, 1")
        a("s_waitcnt vmcnt(0)")
        if wbl: a("buffer_wbl2 sc1"); a("s_waitcnt vmcnt(0)")
        a("s_mov_b64 exec, 1")
        a("buffer_store_dword v2, off, s[84:87], s70 sc1")
        a("s_mov_b64 exec, -1")
        if stamp: a("s_memrealtime s[100:101]")
        a("L_c2:")
        controller()
        if not nocoll: a("s_cmp_lg_u32 s98, 0"); a("s_cbranch_scc1 L_c1")
        for i in range(4*NSP): a(f"v_mov_b32 v{64+i}, 0")
        a("v_mov_b32 v8, 0xf149f2ca"); a("v_mov_b32 v9, 0")
        a(f"v_cmp_gt_u32 vcc, {4*NSP}, v0"); a("s_and_saveexec_b64 s[60:61], vcc")
        a("s_branch L_c3")
        a("L_c1:")
        a("L_c4:")
        if tpoll is not None: a(f"s_sleep {tsleep}"); a(f"buffer_load_dword v10, off, s[84:87], 0 offset:192{tpoll}"); a("s_waitcnt vmcnt(0)")
        else: a("s_sleep 8")
        a("ds_read_b32 v3, v2"); a("s_waitcnt lgkmcnt(0)"); a("v_readfirstlane_b32 s71, v3")
        if tpf:
            a(f"s_sub_u32 s53, s{sT}, s71"); a(f"s_max_i32 s53, s53, s{sTau}"); a(f"s_add_u32 s53, s53, {tpf}"); a(f"s_min_u32 s53, s53, s{sT}")
            a("s_cmp_ge_u32 s52, s53"); a("s_cbranch_scc1 L_c5")
            a("s_lshl_b64 exec, 1, s52"); a("s_add_u32 s52, s52, 1")
            for j in range(4):
                a(f"buffer_load_dword v{152+j}, v{qo[j]}, s[16:19], 0 offen{tpfl}"); a(f"buffer_load_dword v{156+j}, v{qo[j]}, s[20:23], 0 offen{tpfl}")
            a("s_mov_b64 exec, -1")
            a("L_c5:")
        a(f"s_cmp_gt_u32 s71, {wake}"); a("s_cbranch_scc1 L_c4")
        a(f"s_mul_i32 s70, s{sH}, {4*NSP}")
        if nopoll: a("s_branch L_ready")
        a("L_poll:")
        ld = {1:"dword v64", 2:"dwordx2 v[64:65]", 4:"dwordx4 v[64:67]"}[NSP]
        a(f"buffer_load_{ld}, off, s[84:87], s70 sc1")
        a("s_waitcnt vmcnt(0)")
        for s in range(1,NSP): a(f"v_and_b32 v64, v64, v{64+s}")
        a("s_nop 0"); a("v_readfirstlane_b32 s71, v64")
        a("s_cmp_lg_u32 s71, 0"); a("s_cbranch_scc1 L_ready")
        a(f"s_sleep {sleep}"); a("s_branch L_poll")
        a("L_ready:")
        if inv: a("buffer_inv sc1"); a("s_waitcnt vmcnt(0)")
        a(f"s_mul_i32 s70, s{sH}, {NSP*16384}")
        a(f"v_mov_b32 v2, s{sB}"); a(f"v_mov_b32 v3, s{sA}"); a("v_cmp_gt_u32 vcc, 32, v0")
        a("v_and_b32 v6, 31, v0"); a("v_lshlrev_b32 v6, 4, v6")
        a("v_cndmask_b32 v7, v2, v3, vcc"); a("v_lshl_add_u32 v7, v7, 9, v6")
        for s in range(NSP):
            if not noO: a(f"buffer_load_dwordx4 v[{64+4*s}:{67+4*s}], v7, s[88:91], s70 offen{cfl}")
            if s+1 < NSP: a("s_add_u32 s70, s70, 16384")
        a("v_and_b32 v6, 2, v0"); a("v_cmp_eq_u32 vcc, 0, v6")
        a("v_and_b32 v6, 1, v0"); a("s_nop 0")
        a("v_cndmask_b32 v2, v2, v3, vcc")
        a("v_lshl_add_u32 v2, v2, 1, v6"); a("v_lshl_add_u32 v2, v5, 6, v2"); a("v_lshlrev_b32 v2, 3, v2")
        a(f"s_mul_i32 s70, s{sH}, {NSP*512}"); a(f"s_add_u32 s70, s70, {WSML}")
        a(f"v_cmp_gt_u32 vcc, {4*NSP}, v0"); a("s_and_saveexec_b64 s[60:61], vcc")
        if not noml: a(f"buffer_load_dwordx2 v[8:9], v2, s[88:91], s70 offen{cfl}")
        a("s_waitcnt vmcnt(0)")
        a("L_c3:")
        a("ds_write2_b32 v4, v8, v9 offset0:0 offset1:32")
        a("s_mov_b64 exec, s[60:61]")
        for s in range(NSP): a(f"ds_write_b128 v1, v[{64+4*s}:{67+4*s}] offset:{SH+1024*s}")
    st(96)
    a("s_waitcnt lgkmcnt(0)")
    a("s_barrier")
    a("s_branch L_fin")

    a("L_shwg:")
    wKa = [26,27,28,29]; wVa = [30+i for i in range(8)]
    wMx,wLs,wAl,wX,wY = 40,41,42,43,39
    wQ = 44; wP = 60; wO = 96; wF = 128; wD = 160; u = [128+i for i in range(10)]
    sTs = 98; sTa = 99
    a(f"v_and_b32 v{u[0]}, 15, v0")
    g_ = vT[0]
    a(f"s_lshl_b32 s70, s{sW}, 3")
    a(f"v_lshrrev_b32 v{u[2]}, 1, v{u[0]}"); a(f"v_add_u32 v{u[2]}, s70, v{u[2]}")
    a(f"v_lshlrev_b32 v{u[3]}, 2, v{u[2]}")
    a(f"ds_bpermute_b32 v{u[3]}, v{u[3]}, v{vCtx}")
    a(f"v_and_b32 v{u[4]}, 1, v0"); a(f"v_lshlrev_b32 v{u[4]}, 8, v{u[4]}")
    a(f"v_lshl_add_u32 v{u[4]}, v{g_}, 4, v{u[4]}"); a(f"v_lshl_add_u32 v{u[4]}, v{u[2]}, 13, v{u[4]}")
    a(f"v_mov_b32 v{u[5]}, {OOB}")
    a(f"s_lshl_b32 s71, s{sH}, 9")
    a("s_waitcnt lgkmcnt(0)")
    a(f"v_cmp_gt_i32 vcc, 1, v{u[3]}")
    a(f"v_xor_b32 v{u[6]}, v{g_}, v{u[0]}"); a(f"v_lshlrev_b32 v{u[6]}, 4, v{u[6]}")
    a(f"v_cndmask_b32 v{u[4]}, v{u[4]}, v{u[5]}, vcc")
    for k in range(4): a(f"buffer_load_dwordx4 v[{wQ+4*k}:{wQ+4*k+3}], v{u[4]}, s[24:27], s71 offen offset:{64*k}")
    a(f"v_lshl_add_u32 v{wKa[0]}, v{u[0]}, 8, v{u[6]}")
    for k in range(1,4): a(f"v_xor_b32 v{wKa[k]}, {64*k}, v{wKa[0]}")
    a(f"v_bfe_u32 v{u[6]}, v0, 2, 2"); a(f"v_lshl_add_u32 v{u[6]}, v{g_}, 2, v{u[6]}")
    a(f"v_and_b32 v{u[7]}, 7, v{u[6]}"); a(f"v_lshlrev_b32 v{u[7]}, 5, v{u[7]}")
    a(f"v_lshl_add_u32 v{u[7]}, v{u[6]}, 8, v{u[7]}")
    a(f"v_and_b32 v{u[6]}, 3, v0"); a(f"v_lshl_add_u32 v{wVa[0]}, v{u[6]}, 3, v{u[7]}")
    for k in range(1,8): a(f"v_xor_b32 v{wVa[k]}, {32*k}, v{wVa[0]}")
    for i in range(32): a(f"v_mov_b32 v{wO+i}, 0")
    a(f"v_mov_b32 v{wMx}, 0xf149f2ca"); a(f"v_mov_b32 v{wLs}, 0")
    a(f"s_mov_b32 s92, 0x{SC:08x}")
    a(f"s_mov_b32 s{sTa}, 0")
    a(f"s_sub_u32 s93, s{sTs}, {pre}"); a("s_cselect_b32 s93, 0, s93")
    a("s_waitcnt vmcnt(0)")
    fq = lambda k,b: wF+8*k+4*b
    for sl in range(4):
        base = sl*16384
        a(f"L_sh{sl}:")
        a(f"s_cmp_eq_u32 s{sTa}, s93")
        a("s_barrier")
        for k in range(4):
            for b in range(2):
                a(f"ds_read_b128 v[{fq(k,b)}:{fq(k,b)+3}], v{wKa[k]} offset:{base+4096*b}")
        a(f"s_cbranch_scc1 L_shx{sl}")
        a(f"L_shy{sl}:")
        a(f"s_add_u32 s{sTa}, s{sTa}, 1")
        for k in range(4):
            a(f"s_waitcnt lgkmcnt({6-2*k+4*k})")
            for b in range(2):
                c = "0" if k == 0 else f"v[{wD+4*b}:{wD+4*b+3}]"
                a(f"v_mfma_f32_16x16x32_bf16 v[{wD+4*b}:{wD+4*b+3}], v[{fq(k,b)}:{fq(k,b)+3}], v[{wQ+4*k}:{wQ+4*k+3}], {c}")
            for b in range(2):
                dt = 2*k+b
                for bb in range(2):
                    r = fq(k,b)+2*bb
                    a(f"ds_read_b64_tr_b16 v[{r}:{r+1}], v{wVa[dt]} offset:{base+8192+4096*bb}")
        a("s_nop 2")
        a(f"v_max3_f32 v{wX}, v{wD}, v{wD+1}, v{wD+2}")
        a(f"v_max3_f32 v{wX}, v{wX}, v{wD+3}, v{wD+4}")
        a(f"v_max3_f32 v{wY}, v{wD+5}, v{wD+6}, v{wD+7}"); a(f"v_max_f32 v{wX}, v{wX}, v{wY}")
        a(f"v_mov_b32 v{wY}, v{wX}"); a("s_nop 1")
        a(f"v_permlane16_swap_b32 v{wY}, v{wX}"); a(f"v_max_f32 v{wX}, v{wX}, v{wY}")
        a(f"v_mov_b32 v{wY}, v{wX}"); a("s_nop 1")
        a(f"v_permlane32_swap_b32 v{wY}, v{wX}"); a(f"v_max_f32 v{wX}, v{wX}, v{wY}")
        a(f"v_mul_f32 v{wX}, s92, v{wX}"); a(f"v_max_f32 v{wX}, v{wX}, v{wMx}")
        a(f"v_sub_f32 v{wAl}, v{wMx}, v{wX}")
        for i in range(8): a(f"v_fma_f32 v{wD+i}, v{wD+i}, s92, -v{wX}")
        a(f"v_exp_f32 v{wAl}, v{wAl}")
        for i in range(8): a(f"v_exp_f32 v{wD+i}, v{wD+i}")
        a(f"v_mov_b32 v{wMx}, v{wX}")
        for i in range(4): a(f"v_cvt_pk_bf16_f32 v{wP+i}, v{wD+2*i}, v{wD+2*i+1}")
        def omul(dt):
            for i in range(4): a(f"v_mul_f32 v{wO+4*dt+i}, v{wAl}, v{wO+4*dt+i}")
        omul(0); omul(1)
        a(f"v_fma_f32 v{wLs}, v{wLs}, v{wAl}, v{wD}")
        a("s_waitcnt lgkmcnt(0)")
        for dt in range(8):
            r = fq(dt>>1, dt&1)
            a(f"v_mfma_f32_16x16x32_bf16 v[{wO+4*dt}:{wO+4*dt+3}], v[{r}:{r+3}], v[{wP}:{wP+3}], v[{wO+4*dt}:{wO+4*dt+3}]")
            if dt+2 < 8: omul(dt+2)
            if dt < 7: a(f"v_add_f32 v{wLs}, v{wLs}, v{wD+dt+1}")
        a(f"s_cmp_ge_u32 s{sTa}, s{sTs}")
        if sl < 3: a("s_cbranch_scc1 L_shout")
        else: a("s_cbranch_scc0 L_sh0")
    a("L_shout:")
    a("s_barrier")
    a(f"v_mov_b32 v{wY}, v{wLs}")
    a(f"s_mul_i32 s72, s{sW}, {16*RSTR}"); a(f"s_add_u32 s72, s72, {STG}")
    a(f"v_and_b32 v{wD+2}, 15, v0"); a(f"v_lshl_add_u32 v{wD+1}, v{g_}, 4, s72"); a(f"v_mul_u32_u24 v{wD+2}, {RSTR}, v{wD+2}"); a(f"v_add_u32 v{wD+1}, v{wD+1}, v{wD+2}")
    a(f"v_permlane16_swap_b32 v{wY}, v{wLs}"); a(f"v_add_f32 v{wLs}, v{wLs}, v{wY}")
    a(f"v_mov_b32 v{wY}, v{wLs}")
    a(f"v_and_b32 v{wD}, 15, v0")
    a(f"s_lshl_b32 s72, s{sW}, 7"); a(f"s_add_u32 s72, s72, {MLST}")
    a(f"v_permlane32_swap_b32 v{wY}, v{wLs}"); a(f"v_add_f32 v{wLs}, v{wLs}, v{wY}")
    a(f"v_lshl_add_u32 v{wD}, v{wD}, 3, s72")
    for k in range(4):
        for i in range(4): a(f"v_cvt_pk_bf16_f32 v{wF+4*k+i}, v{wO+8*k+2*i}, v{wO+8*k+2*i+1}")
        a(f"ds_write_b128 v{wD+1}, v[{wF+4*k}:{wF+4*k+3}] offset:{64*k}")
    a(f"ds_write_b64 v{wD}, v[{wMx}:{wMx+1}]")
    for i in range(8): a(f"v_mov_b32 v{vOa+i}, 0")
    a(f"v_mov_b32 v{vMx}, 0xf149f2ca"); a(f"v_mov_b32 v{vLs}, 0")
    for j in range(3): a(f"v_mov_b32 v{vP+4*j}, 0"); a(f"v_mov_b32 v{vP+4*j+1}, 0")
    a("s_waitcnt lgkmcnt(0)")
    a("s_barrier")
    if stamp: a("s_memrealtime s[100:101]")
    a("s_branch L_main")
    for sl in range(4):
        a(f"L_shx{sl}:")
        for k in range(NP): issue(0, k)
        a(f"s_branch L_shy{sl}")
    a("L_fin:")
    if ptrace: vEff = 167
    if trace or ptrace:
        a("s_mov_b64 exec, -1")
        a(f"s_mul_i32 s70, s2, 5"); a(f"s_add_u32 s70, s70, s{sW}"); a("s_lshl_b32 s70, s70, 8"); a(f"s_add_u32 s70, s70, {1<<23}")
        a("v_lshl_add_u32 v14, v0, 2, s70")
        a(f"global_store_dword v14, v{vEff}, s[78:79]")
    if stamp:
        a("s_mov_b64 exec, 1")
        a("s_memrealtime s[98:99]"); a("s_waitcnt lgkmcnt(0)")
        a(f"s_mul_i32 s70, s2, 5"); a(f"s_add_u32 s70, s70, s{sW}"); a("s_lshl_b32 s70, s70, 5"); a(f"s_add_u32 s70, s70, {1<<22}")
        a("s_getreg_b32 s83, hwreg(HW_REG_XCC_ID)")
        a(f"s_cmp_ge_u32 s{sW}, 4"); a(f"s_cselect_b32 s71, 1, 0"); a(f"s_lshl_b32 s72, s{sRole}, 1"); a("s_add_u32 s71, s71, s72"); a("s_add_u32 s71, s71, 0x7700")
        a("v_mov_b32 v18, s100"); a("v_mov_b32 v19, s2")
        a("v_mov_b32 v10, s82"); a("v_mov_b32 v11, s30"); a("v_mov_b32 v12, s96"); a("v_mov_b32 v13, s98")
        a("v_mov_b32 v14, s70"); a("v_mov_b32 v16, s83"); a(f"v_mov_b32 v17, s71")
        a("global_store_dwordx4 v14, v[10:13], s[78:79]")
        a("global_store_dwordx4 v14, v[16:19], s[78:79] offset:16")
    if calib:
        a("L_cal:"); a("s_memrealtime s[98:99]"); a("s_waitcnt lgkmcnt(0)"); a("s_sub_u32 s98, s98, s82")
        a(f"s_cmp_lt_u32 s98, {calib}"); a("s_cbranch_scc1 L_cal")
    a("L_end:"); a("s_endpgm")
    hdr = open("ref_stub.s").read()
    top = hdr[:hdr.index("; @launch")]
    out = top + f"; @launch grid=({NWG},1,1) block=(320,1,1) lds={LDSZ}\n"
    out += f""".amdgcn_target "amdgcn-amd-amdhsa--gfx950"
.text
.globl {KNAME}
.p2align 8
.type {KNAME},@function
{KNAME}:
""" + "\n".join(("" if x.endswith(":") else "    ")+x for x in L) + f"""
.section .rodata,"a"
.p2align 6
.amdhsa_kernel {KNAME}
  .amdhsa_next_free_vgpr 168
  .amdhsa_next_free_sgpr 102
  .amdhsa_accum_offset 168
  .amdhsa_group_segment_fixed_size 0
  .amdhsa_kernarg_size 64
  .amdhsa_user_sgpr_count 2
  .amdhsa_user_sgpr_kernarg_segment_ptr 1
  .amdhsa_system_sgpr_workgroup_id_x 1
.end_amdhsa_kernel
"""
    return out
if __name__ == "__main__":
    kw = eval("dict(%s)" % (sys.argv[2] if len(sys.argv) > 2 else ""))
    open(sys.argv[1], "w").write(gen(**kw))
```
